```python
import torch

def _softmax(x, axis=-1):
    return torch.softmax(x, dim=axis)
def _gelu(x):
    return torch.nn.functional.gelu(x, approximate="tanh")
def _silu(x):
    return torch.nn.functional.silu(x)
def _sigmoid(x):
    return torch.sigmoid(x)
def _layernorm(x, axis=-1, eps=1e-5):
    m = x.mean(dim=axis, keepdim=True)
    v = x.var(dim=axis, keepdim=True, unbiased=False)
    return (x - m) / torch.sqrt(v + eps)
def _scatter_add(tgt, idx, src, axis=0):
    return tgt.clone().index_add_(axis, idx, src)
def _segment_sum(src, seg, n):
    out = torch.zeros((n,) + src.shape[1:], dtype=src.dtype)
    return out.index_add_(0, seg, src)
def _pad(x, pw):
    flat = tuple(v for pair in reversed(pw) for v in pair)
    return torch.nn.functional.pad(x, flat)

kernel_name = 'gated_mix__ssm_conv_s4__glu_gated_glu__prompt'

def setup_inputs():

    _w = (lambda a: (lambda t: t.to(torch.bfloat16) if t.is_floating_point() else t)(torch.as_tensor(a)))
    def _A_setup():
        B, L, D, N = 1, 2048, 512, 128
        A_re = -(lambda _x: torch.exp(torch.as_tensor(_x)))((lambda *s: torch.randn(*s, dtype=torch.bfloat16) * 6.4)(D, N))
        A_im = torch.pi * (lambda *s: torch.randn(*s, dtype=torch.bfloat16) * 0.1)(D, N)
        B_re = (lambda *s: torch.randn(*s, dtype=torch.bfloat16) * 0.2)(D, N)
        B_im = (lambda *s: torch.randn(*s, dtype=torch.bfloat16) * 0.2)(D, N)
        C_re = (lambda *s: torch.randn(*s, dtype=torch.bfloat16) * 0.2)(D, N)
        C_im = (lambda *s: torch.randn(*s, dtype=torch.bfloat16) * 0.2)(D, N)
        log_dt = (lambda *s: torch.randn(*s, dtype=torch.bfloat16) * 0.1)(D) * 0.5 - 4.0
        Dskip = (lambda *s: torch.randn(*s, dtype=torch.bfloat16) * 0.1)(D)
        return {
            "u": _w((lambda *s: torch.randn(*s, dtype=torch.bfloat16) * 0.05)(B, L, D)),
            "A_re": _w(A_re),
            "A_im": _w(A_im),
            "B_re": _w(B_re),
            "B_im": _w(B_im),
            "C_re": _w(C_re),
            "C_im": _w(C_im),
            "log_dt": _w(log_dt),
            "Dskip": _w(Dskip),
        }
    _A_in = _A_setup()

    def _B_setup():
        B, S, D, F = 1, 2048, 512, 1792
        return {
            "x": _w((lambda *s: torch.randn(*s, dtype=torch.bfloat16) * 0.05)(B, S, D)),
            "w_gate": _w((lambda *s: torch.randn(*s, dtype=torch.bfloat16) * 0.4)(D, F)),
            "w_up": _w((lambda *s: torch.randn(*s, dtype=torch.bfloat16) * 0.05)(D, F)),
            "w_down": _w((lambda *s: torch.randn(*s, dtype=torch.bfloat16) * 0.05)(F, D)),
        }
    _B_in = _B_setup()

    return {
        "A_u": _A_in["u"],
        "A_A_re": _A_in["A_re"],
        "A_A_im": _A_in["A_im"],
        "A_B_re": _A_in["B_re"],
        "A_B_im": _A_in["B_im"],
        "A_C_re": _A_in["C_re"],
        "A_C_im": _A_in["C_im"],
        "A_log_dt": _A_in["log_dt"],
        "A_Dskip": _A_in["Dskip"],
        "B_x": _B_in["x"],
        "B_w_gate": _B_in["w_gate"],
        "B_w_up": _B_in["w_up"],
        "B_w_down": _B_in["w_down"],
        "gate_w": _w((lambda *s: torch.randn(*s, dtype=torch.bfloat16) * 0.05)(512) * 16.0),
    }

def reference(A_u, A_A_re, A_A_im, A_B_re, A_B_im, A_C_re, A_C_im, A_log_dt, A_Dskip, B_x, B_w_gate, B_w_up, B_w_down, gate_w):
    def _A_ref(u, A_re, A_im, B_re, B_im, C_re, C_im, log_dt, Dskip):
        Bsz, L, D = u.shape
        dt = torch.exp(log_dt)[:, None]
        A = A_re + 1j * A_im
        Bc = B_re + 1j * B_im
        Cc = C_re + 1j * C_im
        logdA = dt * A
        dB = dt * Bc
        l = (lambda x, dt: x.to(dt))(torch.arange(L), A_re.dtype)
        P = torch.exp(logdA[:, :, None] * l[None, None, :])
        K = torch.einsum("dn,dnl,dn->dl", Cc, P, dB).real
        L2 = 2 * L
        Kp = _pad(K, ((0, 0), (0, L)))
        up = (lambda x, *d: x.permute(*d))(u, 0, 2, 1)
        up = _pad(up, ((0, 0), (0, 0), (0, L)))
        Kf = (lambda x, axes=(-2,-1): torch.fft.rfft2(x.float(), dim=axes))(Kp[:, None, :], axes=(-2, -1))
        Uf = (lambda x, axes=(-2,-1): torch.fft.rfft2(x.float(), dim=axes))(up[:, :, None, :], axes=(-2, -1))
        Yf = Uf * Kf[None, :, :, :]
        y = (lambda x, s, axes=(-2,-1): torch.fft.irfft2(x, s=s, dim=axes).to(torch.bfloat16))(Yf, (1, L2), axes=(-2, -1))[:, :, 0, :L]
        y = (lambda x, *d: x.permute(*d))(y, 0, 2, 1) + u * Dskip[None, None, :]
        return y

    def _B_ref(x, w_gate, w_up, w_down):
        g = torch.einsum("bsd,df->bsf", x, w_gate)
        u = torch.einsum("bsd,df->bsf", x, w_up)
        h = _sigmoid(g) * u
        return torch.einsum("bsf,fd->bsd", h, w_down)

    x = A_u
    g = _sigmoid((x * gate_w).sum(-1, keepdims=True))
    a = _A_ref(x, A_A_re, A_A_im, A_B_re, A_B_im, A_C_re, A_C_im, A_log_dt, A_Dskip)
    b = _B_ref(x, B_w_gate, B_w_up, B_w_down)
    return g * a + (1 - g) * b
```

```python
import re

TRANS = ("v_exp_f32", "v_log_f32", "v_rcp_f32", "v_rsq_f32", "v_sqrt_f32", "v_sin_f32", "v_cos_f32")


def regs_of(tok):
    tok = tok.strip()
    tok = tok.lstrip("-")
    m = re.fullmatch(r"abs\((.*)\)|\|(.*)\|", tok)
    if m:
        tok = m.group(1) or m.group(2)
    m = re.fullmatch(r"([vs])(\d+)", tok)
    if m:
        return {(m.group(1), int(m.group(2)))}
    m = re.fullmatch(r"([vs])\[(\d+):(\d+)\]", tok)
    if m:
        return {(m.group(1), i) for i in range(int(m.group(2)), int(m.group(3)) + 1)}
    if tok in ("vcc", "vcc_lo", "vcc_hi"):
        return {("x", "vcc")}
    if tok in ("exec", "exec_lo", "exec_hi"):
        return {("x", "exec")}
    if tok == "m0":
        return {("x", "m0")}
    return set()


class Ins:
    __slots__ = ("text", "op", "ops", "kind", "wr", "rd", "passes", "srcc", "ab", "dpp", "wide_store", "lds_dma", "states", "label", "target")

    def __init__(self, text):
        self.text = text
        t = text.split(";")[0].strip()
        self.label = None
        self.target = None
        self.kind = "other"
        self.wr = set()
        self.rd = set()
        self.passes = 0
        self.srcc = set()
        self.ab = set()
        self.dpp = False
        self.wide_store = set()
        self.lds_dma = False
        self.states = 1
        self.op = ""
        self.ops = []
        if not t or t.startswith("."):
            self.kind = "none"
            self.states = 0
            return
        if t.endswith(":"):
            self.kind = "none"
            self.states = 0
            self.label = t[:-1]
            return
        parts = t.split(None, 1)
        op = parts[0]
        self.op = op
        rest = parts[1] if len(parts) > 1 else ""
        ops, depth, cur = [], 0, ""
        for ch in rest:
            if ch in "[(":
                depth += 1
            if ch in "])":
                depth -= 1
            if ch == "," and depth == 0:
                ops.append(cur.strip())
                cur = ""
            else:
                cur += ch
        if cur.strip():
            ops.append(cur.strip())
        mods = ""
        if ops:
            sp = ops[-1].split(None, 1)
            ops[-1] = sp[0]
            mods = sp[1] if len(sp) > 1 else ""
        self.ops = ops
        R = [regs_of(o) for o in ops]
        if op == "s_nop":
            self.kind = "salu"
            self.states = int(ops[0], 0) + 1
        elif op.startswith("s_cbranch") or op == "s_branch":
            self.kind = "branch"
            self.target = ops[0]
        elif op.startswith("s_"):
            self.kind = "salu"
            if op.startswith("s_cmp") or op in ("s_barrier", "s_waitcnt", "s_endpgm", "s_sleep", "s_setprio"):
                for r in R:
                    self.rd |= r
            else:
                if R:
                    self.wr |= R[0]
                for r in R[1:]:
                    self.rd |= r
                if "saveexec" in op:
                    self.wr |= {("x", "exec")}
        elif op.startswith("v_mfma"):
            self.kind = "mfma"
            self.passes = 8 if "32x32x16" in op else 4
            self.wr = R[0]
            self.ab = R[1] | R[2]
            self.srcc = R[3]
            self.rd = self.ab | self.srcc
        elif op.startswith("v_"):
            self.kind = "trans" if op.replace("_e32", "").replace("_e64", "") in TRANS else "valu"
            self.dpp = "_dpp" in op or "quad_perm" in mods or "row_" in mods
            if "permlane" in op and "swap" in op:
                self.wr = R[0] | R[1]
                self.rd = R[0] | R[1]
            elif op.startswith("v_add_co") or op.startswith("v_sub_co") or op.startswith("v_addc_co"):
                self.wr = R[0] | R[1]
                for r in R[2:]:
                    self.rd |= r
            else:
                self.wr = R[0]
                for r in R[1:]:
                    self.rd |= r
                if op.startswith(("v_fmac", "v_dot2c", "v_pk_fmac")) or self.dpp or "d16" in op:
                    self.rd |= R[0]
                if op.startswith("v_cmpx"):
                    self.wr |= {("x", "exec")}
        elif op.startswith("ds_"):
            self.kind = "ds"
            if op.startswith("ds_read") or "_rtn" in op or "permute" in op or "swizzle" in op:
                self.wr = R[0]
                for r in R[1:]:
                    self.rd |= r
                if "d16" in op:
                    self.rd |= R[0]
            else:
                for r in R:
                    self.rd |= r
            if "addtid" in op:
                self.lds_dma = True
        elif op.startswith(("buffer_", "global_")):
            self.kind = "vmem"
            islds = re.search(r"\blds\b", mods) is not None or "load_lds" in op
            if islds:
                self.lds_dma = True
                for r in R:
                    self.rd |= r
            elif "load" in op:
                self.wr = R[0]
                for r in R[1:]:
                    self.rd |= r
            else:
                for r in R:
                    self.rd |= r
                if "x3" in op or "x4" in op:
                    d = R[0] if op.startswith("buffer_") else R[1]
                    self.wide_store = d
                if "atomic" in op and "sc0" in mods:
                    self.wr = R[0]
        else:
            raise ValueError("unknown instruction: " + text)


def need(prod, cons):
    n = 0
    pv = prod.kind in ("valu", "trans")
    cv = cons.kind in ("valu", "trans")
    if pv:
        wv = {r for r in prod.wr if r[0] == "v"}
        ws = {r for r in prod.wr if r[0] == "s" or r == ("x", "vcc")}
        wexec = ("x", "exec") in prod.wr
        if cons.kind == "mfma" and (wv & cons.rd):
            n = max(n, 2)
        if cv and cons.dpp and (wv & cons.rd):
            n = max(n, 2)
        if cv and "permlane" in cons.op and (wv & cons.rd):
            n = max(n, 2)
        if cv and cons.op.startswith(("v_readlane", "v_readfirstlane")) and (wv & cons.rd):
            n = max(n, 1)
        if prod.kind == "trans" and cons.kind != "trans" and (wv & (cons.rd)) and cons.kind in ("valu", "mfma", "ds", "vmem"):
            n = max(n, 1)
        if ("sdwa" in prod.op or "op_sel" in prod.text) and cv and (wv & (cons.rd | cons.wr)):
            n = max(n, 1)
        if ws:
            crd = set(cons.rd)
            if cv and cons.op.startswith(("v_cndmask", "v_addc", "v_subb")) and len(cons.ops) <= 3:
                crd |= {("x", "vcc")}
            if cons.kind == "vmem" and (ws & crd):
                n = max(n, 5)
            if cv and (ws & crd):
                n = max(n, 4 if cons.op.startswith(("v_readlane", "v_writelane")) else 2)
            if cons.kind in ("salu", "branch") and (ws & crd):
                n = max(n, 1)
        if wexec:
            if cons.kind == "mfma":
                n = max(n, 4)
            if cv and cons.dpp:
                n = max(n, 5)
            if cv and ("permlane" in cons.op or cons.op.startswith(("v_readlane", "v_readfirstlane", "v_writelane"))):
                n = max(n, 4)
    if prod.kind == "salu" and ("x", "m0") in prod.wr and cons.lds_dma:
        n = max(n, 1)
    if prod.wide_store and (prod.wide_store & cons.wr):
        n = max(n, 2 if cv or cons.kind == "mfma" else 1)
    if prod.kind == "mfma":
        p = prod.passes
        big = {4: 8, 8: 12}[p]
        if cons.kind == "mfma":
            if prod.wr & cons.ab:
                n = max(n, big)
            if prod.wr & cons.srcc:
                if prod.wr == cons.srcc and cons.passes == p:
                    pass
                else:
                    n = max(n, {4: 6, 8: 10}[p])
            elif prod.wr & cons.wr:
                n = max(n, {4: 6, 8: 10}[p])
        elif cons.kind in ("valu", "trans", "ds", "vmem"):
            if prod.wr & (cons.rd | cons.wr):
                n = max(n, big)
            if cv and (prod.srcc & cons.wr):
                n = max(n, {4: 3, 8: 7}[p])
    return n


WINDOW = 14


def pad_hazards(lines):
    ins = [Ins(l) for l in lines]
    labels = {i.label: k for k, i in enumerate(ins) if i.label}
    out = []

    def deficit(hist, cons):
        d = 0
        dist = 0
        for p in reversed(hist):
            if p.kind == "none":
                continue
            nd = need(p, cons)
            if nd > dist:
                d = max(d, nd - dist)
            dist += p.states
            if dist >= WINDOW:
                break
        return d

    def nop(n):
        res = []
        while n > 0:
            k = min(n, 16)
            res.append(Ins(f"s_nop {k-1}"))
            n -= k
        return res

    for k, i in enumerate(ins):
        if i.kind == "none":
            out.append(i)
            continue
        d = deficit(out[-40:], i)
        if d:
            out += nop(d)
        if i.kind == "branch" and i.target in labels:
            hist = out[-40:] + [i]
            extra = 0
            sim = list(hist)
            tot = 0
            for t in ins[labels[i.target]:labels[i.target] + 40]:
                if t.kind == "none":
                    continue
                dist = tot
                for p in reversed(hist):
                    if p.kind == "none":
                        continue
                    nd = need(p, t)
                    if nd > dist:
                        extra = max(extra, nd - dist)
                    dist += p.states
                    if dist >= WINDOW:
                        break
                tot += t.states
                if tot >= WINDOW or t.kind == "branch" and t.op == "s_branch":
                    break
            if extra:
                out += nop(extra)
        out.append(i)
    return [i.text for i in out]


class Asm:
    def __init__(self):
        self.lines = []

    def __call__(self, text):
        for l in text.split("\n"):
            l = l.strip()
            if l:
                self.lines.append(l)

    def extend(self, ls):
        for l in ls:
            self(l)


def vr(b, n=1):
    return f"v{b}" if n == 1 else f"v[{b}:{b+n-1}]"


def sr(b, n=1):
    return f"s{b}" if n == 1 else f"s[{b}:{b+n-1}]"


def interleave(main, fill, per=None, start=0):
    out = []
    fill = list(fill)
    if per is None:
        per = -(-len(fill) // max(1, len(main) - start))
    for k, m in enumerate(main):
        out.append(m)
        if k >= start:
            for _ in range(per):
                if fill:
                    out.append(fill.pop(0))
    out += fill
    return out


def kernel_text(name, body_lines, vgprs=256, sgprs=102):
    body = pad_hazards(body_lines)
    txt = [f".globl {name}", ".p2align 8", f".type {name},@function", f"{name}:"]
    txt += ["  " + l if not l.endswith(":") else l for l in body]
    desc = [f".amdhsa_kernel {name}",
            f"  .amdhsa_next_free_vgpr {vgprs}",
            f"  .amdhsa_next_free_sgpr {sgprs}",
            f"  .amdhsa_accum_offset {((vgprs + 3) // 4) * 4 if vgprs <= 256 else 256}",
            "  .amdhsa_group_segment_fixed_size 0",
            "  .amdhsa_kernarg_size 136",
            "  .amdhsa_user_sgpr_count 2",
            "  .amdhsa_user_sgpr_kernarg_segment_ptr 1",
            "  .amdhsa_system_sgpr_workgroup_id_x 1",
            ".end_amdhsa_kernel"]
    return "\n".join(txt), "\n".join(desc)
```

```python
import sys
from asmlib import *

NAME = "gated_mix__ssm_conv_s4__glu_gated_glu__prompt"

WS_H = 0x0
WS_WD = 0x700000
WS_UT = 0x900000
WS_AT = 0xB00000
WS_KC = 0xD00000
WS_G = 0xE00000
WS_SIZE = 0x1000000
KC_PITCH = 1536

LOG2E = 0x3fb8aa3b
NLOG2E = 0xbfb8aa3b
INV2PI = 0x3e22f983

P = {n: 32 + 2 * i for i, n in enumerate(
    ["u", "are", "aim", "bre", "bim", "cre", "cim", "ldt", "dsk", "bx", "wg", "wu", "wd", "gw", "out", "dbg", "ws"])}


def load_ptrs(A):
    A("s_load_dwordx16 s[32:47], s[0:1], 0")
    A("s_load_dwordx16 s[48:63], s[0:1], 64")
    A("s_load_dwordx2 s[64:65], s[0:1], 128")


def srd(A, d, ptr, nbytes):
    A(f"s_mov_b32 s{d}, s{P[ptr]}")
    A(f"s_mov_b32 s{d+1}, s{P[ptr]+1}")
    A(f"s_mov_b32 s{d+2}, {nbytes:#x}")
    A(f"s_mov_b32 s{d+3}, 0x20000")


K1_X = 0
K1_W = 49152
K1_SCR0 = 131072
K1_SCR1 = 32768
SCR_PITCH = 528
P_L1 = [0, 1, 2, 3, 4, 5, 6, 7, 256, 258, 260, 262, 512, 516, 768, 772, 1024, 1280, 1536, 1792, 2048]


def cmul(dr, di, ar, ai, br, bi, t0, t1):
    return [f"v_mul_f32 v{t0}, v{ai}, v{bi}",
            f"v_mul_f32 v{t1}, v{ai}, v{br}",
            f"v_fma_f32 v{di}, v{ar}, v{bi}, v{t1}",
            f"v_fma_f32 v{dr}, v{ar}, v{br}, -v{t0}"]


def kgen_parts():
    L = []
    L.append("s_lshl_b32 s73, s70, 8")
    L.append("s_lshl_b32 s74, s71, 7")
    L.append("s_add_u32 s73, s73, s74")
    L.append("v_lshl_add_u32 v2, v1, 1, s73")
    L.append("s_lshl_b32 s73, s70, 1")
    L.append("v_mov_b32 v3, s73")
    for i, n in enumerate(["are", "aim", "bre", "bim", "cre", "cim"]):
        L.append(f"global_load_ushort v{10+i}, v2, s[{P[n]}:{P[n]+1}]")
    L.append(f"global_load_ushort v16, v3, s[{P['ldt']}:{P['ldt']+1}]")
    L.append(f"global_load_ushort v17, v3, s[{P['dsk']}:{P['dsk']+1}]")
    NLOADS = 8
    G = []
    for i in range(8):
        G.append(f"v_lshlrev_b32 v{10+i}, 16, v{10+i}")
    G.append(f"v_mul_f32 v16, {LOG2E:#x}, v16")
    G.append("v_exp_f32 v16, v16")
    G.append("v_cvt_pk_bf16_f32 v16, v16, v16")
    G.append("v_lshlrev_b32 v16, 16, v16")
    G.append("v_mul_f32 v10, v16, v10")
    G.append("v_mul_f32 v11, v16, v11")
    G.append(f"v_mul_f32 v10, {LOG2E:#x}, v10")
    G.append(f"v_mul_f32 v11, {INV2PI:#x}, v11")
    G.append("v_mul_f32 v12, v16, v12")
    G.append("v_mul_f32 v13, v16, v13")
    G += cmul(18, 19, 14, 15, 12, 13, 20, 21)
    for (m, d) in ((1.0, 22), (8.0, 24), (256.0, 26)):
        import struct
        mb = struct.unpack("<I", struct.pack("<f", m))[0]
        G.append(f"v_mul_f32 v20, {mb:#x}, v10")
        G.append(f"v_mul_f32 v21, {mb:#x}, v11")
        G.append("v_exp_f32 v20, v20")
        G.append("v_fract_f32 v21, v21")
        G.append(f"v_cos_f32 v{d}, v21")
        G.append(f"v_sin_f32 v{d+1}, v21")
        G.append(f"v_mul_f32 v{d}, v20, v{d}")
        G.append(f"v_mul_f32 v{d+1}, v20, v{d+1}")
    PB = 64
    QB = 96

    def packP(row, r, i):
        return f"v_cvt_pk_bf16_f32 v{PB+row}, v{r}, -v{i}"

    def packQ(row, r, i):
        return f"v_cvt_pk_bf16_f32 v{QB+row}, v{r}, v{i}"
    Pc = []
    Pc.append(packP(0, 18, 19))
    cur = (18, 19)
    keep = {}
    free = [(28, 29), (30, 31), (32, 33), (34, 35), (36, 37), (38, 39), (40, 41)]
    for i in range(1, 8):
        d = free[i - 1]
        Pc += cmul(d[0], d[1], cur[0], cur[1], 22, 23, 20, 21)
        Pc.append(packP(i, *d))
        keep[i] = d
        cur = d
    for i, row in ((2, 9), (4, 10), (6, 11)):
        d = keep[i]
        Pc += cmul(d[0], d[1], d[0], d[1], 26, 27, 20, 21)
        Pc.append(packP(row, *d))
    for row in (13, 15):
        d = keep[4]
        Pc += cmul(d[0], d[1], d[0], d[1], 26, 27, 20, 21)
        Pc.append(packP(row, *d))
    for a, row in ((1, 8), (2, 12), (3, 14), (4, 16), (5, 17), (6, 18), (7, 19), (8, 20)):
        Pc += cmul(18, 19, 18, 19, 26, 27, 20, 21)
        Pc.append(packP(row, 18, 19))
    Qc = []
    Qc.append(f"v_mov_b32 v{QB}, 0x3f80")
    Qc.append(packQ(1, 24, 25))
    Qc += cmul(42, 43, 24, 25, 24, 25, 44, 45)
    Qc.append(packQ(2, 42, 43))
    for j in range(3, 32):
        Qc += cmul(42, 43, 42, 43, 24, 25, 44, 45)
        Qc.append(packQ(j, 42, 43))
    while Pc or Qc:
        if Qc:
            G.append(Qc.pop(0))
        if Pc:
            G.append(Pc.pop(0))
    W = []
    W.append("s_lshl_b32 s73, s71, 8")
    W.append("s_add_u32 s73, s73, s72")
    W.append("v_lshl_add_u32 v2, v1, 2, s73")
    for r in range(21):
        W.append(f"ds_write_b32 v2, v{PB+r} offset:{r*SCR_PITCH}")
    for r in range(32):
        W.append(f"ds_write_b32 v2, v{QB+r} offset:{(21+r)*SCR_PITCH}")
    W.append("s_waitcnt lgkmcnt(0)")
    M = []
    M.append("v_and_b32 v2, 15, v1")
    M.append("v_lshrrev_b32 v3, 4, v1")
    M.append(f"v_mul_u32_u24 v4, {SCR_PITCH}, v2")
    M.append("v_lshl_add_u32 v4, v3, 4, v4")
    M.append("v_add_u32 v4, s72, v4")
    M.append(f"s_mul_i32 s73, s71, {16*SCR_PITCH}")
    M.append(f"s_add_u32 s73, s73, {21*SCR_PITCH}")
    M.append("v_add_u32 v5, s73, v4")
    for ks in range(8):
        M.append(f"ds_read_b128 v[{128+12*ks}:{131+12*ks}], v4 offset:{ks*64}")
        M.append(f"ds_read_b128 v[{132+12*ks}:{135+12*ks}], v4 offset:{ks*64+16*SCR_PITCH}")
        M.append(f"ds_read_b128 v[{136+12*ks}:{139+12*ks}], v5 offset:{ks*64}")
    M.append("v_lshl_add_u32 v6, s71, 6, v1")
    M.append("v_cmp_eq_u32 vcc, 0, v6")
    M.append("v_cndmask_b32 v48, 0, v17, vcc")
    for r in (49, 50, 51, 52, 53, 54, 55):
        M.append(f"v_mov_b32 v{r}, 0")
    M.append("v_lshl_add_u32 v6, s71, 4, v2")
    M.append("v_lshlrev_b32 v7, 3, v6")
    M.append("v_lshl_add_u32 v7, v3, 2, v7")
    M.append("v_lshlrev_b32 v8, 2, v6")
    M.append("v_add_u32 v8, 256, v8")
    M.append("v_cmp_eq_u32 vcc, 2, v3")
    M.append("v_cndmask_b32 v7, v7, v8, vcc")
    M.append("v_lshlrev_b32 v8, 1, v6")
    M.append("v_add_u32 v8, 384, v8")
    M.append("v_cmp_eq_u32 vcc, 3, v3")
    M.append("v_cndmask_b32 v7, v7, v8, vcc")
    M.append("v_cndmask_b32 v8, 2, 64, vcc")
    M.append("v_add_u32 v8, v7, v8")
    M.append("v_lshlrev_b32 v7, 1, v7")
    M.append("v_lshlrev_b32 v8, 1, v8")
    M.append("v_lshl_add_u32 v9, v3, 7, v6")
    M.append("v_add_u32 v9, 512, v9")
    M.append("v_lshlrev_b32 v9, 1, v9")
    M.append("v_mov_b32 v56, 0x2000000")
    M.append("v_cmp_gt_u32 vcc, 2, v3")
    M.append("v_cndmask_b32 v9, v56, v9, vcc")
    M.append(f"s_mul_i32 s73, s70, {KC_PITCH}")
    M.append(f"s_add_u32 s73, s73, {WS_KC:#x}")
    for ks in range(8):
        M.append(f"s_waitcnt lgkmcnt({min(15, 3*(7-ks))})")
        M.append(f"v_mfma_f32_16x16x32_bf16 v[48:51], v[{128+12*ks}:{131+12*ks}], v[{136+12*ks}:{139+12*ks}], v[48:51]")
        M.append(f"v_mfma_f32_16x16x32_bf16 v[52:55], v[{132+12*ks}:{135+12*ks}], v[{136+12*ks}:{139+12*ks}], v[52:55]")
    M.append("v_cvt_pk_bf16_f32 v48, v48, v49")
    M.append("v_cvt_pk_bf16_f32 v50, v50, v51")
    M.append("v_cvt_pk_bf16_f32 v52, v52, v53")
    M.append("v_cvt_pk_bf16_f32 v54, v54, v55")
    M.append("buffer_store_dword v48, v7, s[16:19], s73 offen")
    M.append("buffer_store_dword v50, v8, s[16:19], s73 offen")
    M.append("buffer_store_short v52, v9, s[16:19], s73 offen")
    M.append("buffer_store_short_d16_hi v52, v9, s[16:19], s73 offen offset:64")
    M.append("buffer_store_short v54, v9, s[16:19], s73 offen offset:128")
    M.append("buffer_store_short_d16_hi v54, v9, s[16:19], s73 offen offset:192")
    return L, NLOADS, G, W, M


def gen_k1():
    A = Asm()
    A("s_cmp_ge_u32 s2, 256")
    A("s_cbranch_scc1 K1_END")
    load_ptrs(A)
    A("v_and_b32 v1, 63, v0")
    A("v_lshrrev_b32 v2, 6, v0")
    A("v_readfirstlane_b32 s3, v2")
    A("s_and_b32 s24, s2, 7")
    A("s_lshr_b32 s25, s2, 3")
    A("s_lshr_b32 s26, s24, 1")
    A("s_lshl_b32 s26, s26, 2")
    A("s_and_b32 s29, s25, 3")
    A("s_add_u32 s26, s26, s29")
    A("s_and_b32 s27, s24, 1")
    A("s_mul_i32 s27, s27, 7")
    A("s_lshr_b32 s30, s25, 2")
    A("s_add_u32 s27, s27, s30")
    A("s_lshl_b32 s28, s29, 1")
    A("s_add_u32 s28, s28, s30")
    A("s_and_b32 s28, s28, 7")
    A("s_waitcnt lgkmcnt(0)")
    srd(A, 4, "u", 0x200000)
    srd(A, 8, "wg", 0x1C0000)
    srd(A, 12, "wu", 0x1C0000)
    srd(A, 16, "ws", WS_SIZE)
    srd(A, 20, "wd", 0x1C0000)
    A("s_cmp_ge_u32 s3, 4")
    A("s_cbranch_scc1 K1_HELP")
    A("s_cmp_ge_u32 s25, 28")
    A("s_cbranch_scc1 K1_PREP")

    ACC = 128
    FA = [16, 40]
    A("v_and_b32 v2, 31, v1")
    A("v_lshrrev_b32 v3, 5, v1")
    A("v_bfe_u32 v4, v1, 1, 3")
    A("v_xor_b32 v4, v4, v3")
    A("v_lshlrev_b32 v2, 7, v2")
    for k in range(4):
        A(f"v_xor_b32 v5, {2*k}, v4")
        A(f"v_lshl_add_u32 v{8+k}, v5, 4, v2")
    A("v_bfe_u32 v2, v1, 4, 1")
    A("v_bfe_u32 v4, v1, 2, 2")
    A("v_lshl_add_u32 v5, v3, 3, v4")
    A("v_lshlrev_b32 v5, 8, v5")
    A("v_lshl_add_u32 v5, v2, 13, v5")
    A("v_and_b32 v6, 3, v1")
    A("v_lshl_add_u32 v5, v6, 3, v5")
    A(f"v_add_u32 v5, {K1_W}, v5")
    A("v_lshl_add_u32 v4, v4, 1, v2")
    A("s_lshl_b32 s29, s3, 1")
    A("v_xor_b32 v4, s29, v4")
    A("v_lshl_add_u32 v12, v4, 5, v5")
    A("v_xor_b32 v4, 1, v4")
    A("v_lshl_add_u32 v13, v4, 5, v5")
    for r in range(128):
        A(f"v_mov_b32 v{ACC+r}, 0")
    A(f"s_mov_b32 s29, {4*16384}")
    A("s_mov_b32 s30, 0")
    A("v_add_u32 v14, s29, v12")
    A("v_add_u32 v15, s29, v13")

    def reads(st, ks, xreg):
        f = FA[st]
        R = []
        R.append(f"ds_read_b128 v[{f+8}:{f+11}], v{xreg} offset:0")
        R.append(f"ds_read_b64_tr_b16 v[{f}:{f+1}], v14 offset:{(16*ks)*256}")
        R.append(f"ds_read_b64_tr_b16 v[{f+2}:{f+3}], v14 offset:{(16*ks+4)*256}")
        for mt in (1, 2, 3):
            R.append(f"ds_read_b128 v[{f+8+4*mt}:{f+11+4*mt}], v{xreg} offset:{mt*4096}")
        R.append(f"ds_read_b64_tr_b16 v[{f+4}:{f+5}], v15 offset:{(16*ks)*256}")
        R.append(f"ds_read_b64_tr_b16 v[{f+6}:{f+7}], v15 offset:{(16*ks+4)*256}")
        return R

    def mfmas(st):
        f = FA[st]
        return [f"v_mfma_f32_32x32x16_bf16 v[{ACC+16*(4*a+mt)}:{ACC+16*(4*a+mt)+15}], v[{f+4*a}:{f+4*a+3}], v[{f+8+4*mt}:{f+11+4*mt}], v[{ACC+16*(4*a+mt)}:{ACC+16*(4*a+mt)+15}]"
                for a in range(2) for mt in range(4)]

    A("s_barrier")
    A.extend(reads(0, 0, 8))
    A("s_mov_b32 s31, 0")
    A("K1_LOOP:")
    for k in range(4):
        st = k & 1
        pre = []
        if k == 3:
            pre += ["s_add_u32 s30, s30, 16384", "s_cmp_eq_u32 s30, 49152", "s_cselect_b32 s30, 0, s30"]
        if k & 1:
            pre += ["s_add_u32 s29, s29, 16384", f"s_cmp_eq_u32 s29, {5*16384}", "s_cselect_b32 s29, 0, s29",
                    "v_add_u32 v14, s29, v12", "v_add_u32 v15, s29, v13"]
        pre += [f"v_add_u32 v7, s30, v{8+(k+1)%4}"]
        mm = mfmas(st)
        A("s_waitcnt lgkmcnt(0)")
        A(mm[0])
        if k & 1:
            A("s_barrier")
        A.extend(pre)
        A.extend(interleave(mm[1:], reads(1 - st, (k + 1) & 1, 7), per=2))
    A("s_add_u32 s31, s31, 1")
    A("s_cmp_lt_u32 s31, 8")
    A("s_cbranch_scc1 K1_LOOP")
    A("s_waitcnt lgkmcnt(0)")
    A("v_lshlrev_b32 v2, 4, v1")
    A(f"s_mul_i32 s29, s26, {4*112*1024}")
    A("s_lshl_b32 s30, s27, 13")
    A("s_add_u32 s29, s29, s30")
    A("s_lshl_b32 s30, s3, 11")
    A("s_add_u32 s29, s29, s30")
    A(f"s_mov_b32 s66, {NLOG2E:#x}")
    for mt in range(4):
        for a in range(2):
            c = ACC + 16 * (4 * a + mt)
            for r in range(8):
                A(f"v_mul_f32 v{c+r}, s66, v{c+r}")
            for r in range(8):
                A(f"v_exp_f32 v{c+r}, v{c+r}")
            for r in range(8):
                A(f"v_add_f32 v{c+r}, 1.0, v{c+r}")
            for r in range(8):
                A(f"v_rcp_f32 v{c+r}, v{c+r}")
            for r in range(8):
                A(f"v_mul_f32 v{c+r}, v{c+r}, v{c+8+r}")
            for r in range(4):
                A(f"v_cvt_pk_bf16_f32 v{c+r}, v{c+2*r}, v{c+2*r+1}")
            A(f"buffer_store_dwordx4 v[{c}:{c+3}], v2, s[16:19], s29 offen offset:{a*1024}")
        if mt < 3:
            A(f"s_add_u32 s29, s29, {112*1024}")
    A("s_endpgm")

    A("K1_HELP:")
    A("s_sub_u32 s3, s3, 4")
    A("s_lshr_b32 s69, s3, 1")
    A("s_lshl_b32 s70, s2, 1")
    A("s_add_u32 s70, s70, s69")
    A("s_and_b32 s71, s3, 1")
    A("s_cmp_eq_u32 s69, 0")
    A(f"s_mov_b32 s72, {K1_SCR1}")
    A(f"s_cselect_b32 s72, {K1_SCR0}, s72")
    L, NL, G, W, M = kgen_parts()
    A.extend(L)
    A("v_lshrrev_b32 v4, 4, v1")
    A("v_and_b32 v5, 15, v1")
    A("v_lshlrev_b32 v6, 2, v4")
    A("v_xor_b32 v5, v5, v6")
    A("v_mul_u32_u24 v6, 3584, v4")
    A("v_lshl_add_u32 v60, v5, 4, v6")
    A("v_xor_b32 v5, 2, v5")
    A("v_lshl_add_u32 v61, v5, 4, v6")
    A("s_lshl_b32 s75, s71, 2")
    A("v_add_u32 v4, s75, v4")
    A("v_and_b32 v5, 7, v1")
    A("v_xor_b32 v5, v5, v4")
    A("v_lshrrev_b32 v6, 3, v1")
    A("v_lshlrev_b32 v6, 10, v6")
    A("v_lshl_add_u32 v62, v5, 4, v6")
    A(f"s_mul_i32 s76, s3, {8*3584}")
    A("s_lshl_b32 s78, s27, 8")
    A("s_add_u32 s76, s76, s78")
    A("s_lshl_b32 s77, s26, 17")
    A("s_lshl_b32 s78, s3, 13")
    A("s_add_u32 s77, s77, s78")
    A("s_lshl_b32 s79, s3, 11")
    A("s_lshl_b32 s80, s3, 10")
    A("s_cmp_ge_u32 s25, 28")
    A("s_cselect_b32 s81, 1, 0")

    def dmaW(s):
        R = []
        R.append(f"s_add_u32 s82, s28, {s>>1}")
        R.append("s_and_b32 s82, s82, 7")
        R.append(f"s_mul_i32 s82, s82, {64*3584}")
        R.append("s_add_u32 s82, s82, s76")
        if s & 1:
            R.append(f"s_add_u32 s82, s82, {32*3584}")
        R.append(f"s_add_u32 s83, s82, {4*3584}")
        base = K1_W + ((s + 4) % 5) * 16384
        for gu in range(2):
            for i in range(2):
                R.append(f"s_add_u32 m0, s79, {base + gu*8192 + i*1024}")
                R.append(f"buffer_load_dwordx4 v{60+gu}, s[{8+4*gu}:{11+4*gu}], s{82+i} offen lds")
        return R

    def dmaX(c):
        R = []
        R.append(f"s_add_u32 s82, s28, {c}")
        R.append("s_and_b32 s82, s82, 7")
        R.append("s_lshl_b32 s82, s82, 7")
        R.append("s_add_u32 s82, s82, s77")
        base = K1_X + (c % 3) * 16384
        for i in range(4):
            R.append(f"s_add_u32 m0, s80, {base + i*4096}")
            R.append(f"buffer_load_dwordx4 v62, s[4:7], s82 offen lds")
            if i < 3:
                R.append(f"s_add_u32 s82, s82, {32*1024}")
        return R

    nlab = [0]

    def guarded(R):
        nlab[0] += 1
        lab = f"K1_SK{nlab[0]}"
        return ["s_cmp_eq_u32 s81, 1", f"s_cbranch_scc1 {lab}"] + R + [f"{lab}:"]

    issued = []
    first = dmaX(0) + dmaW(0) + dmaW(1) + dmaX(1) + dmaW(2) + dmaW(3) + dmaX(2) + dmaW(4)
    issued += ["X0", "W0", "W1", "X1", "W2", "W3", "X2", "W4"]
    A("s_cmp_eq_u32 s81, 1")
    A("s_cbranch_scc0 K1_H0")
    A("s_waitcnt vmcnt(0)")
    A("s_branch K1_H1")
    A("K1_H0:")
    A.extend(first)
    A("K1_H1:")

    def waitfor(needed):
        last = max(issued.index(n) for n in needed)
        return f"s_waitcnt vmcnt({4*(len(issued)-1-last)})"

    A(waitfor(["X0", "W0"]))
    A("s_barrier")
    nseg = 11
    per = -(-len(G) // nseg)
    for s in range(16):
        if s < nseg:
            A.extend(G[s * per:(s + 1) * per])
        if s == 12:
            A.extend(W)
        if s == 13:
            A("s_waitcnt vmcnt(0)")
            A.extend(M)
        if s + 1 < 16 and s < 13:
            nd = [f"W{s+1}"] + ([f"X{(s+1)//2}"] if (s + 1) % 2 == 0 else [])
            A(waitfor(nd))
        A("s_barrier")
        R = []
        if s & 1 and (s + 1) // 2 + 2 < 8:
            R += dmaX((s + 1) // 2 + 2)
            issued.append(f"X{(s+1)//2+2}")
        if s + 5 < 16:
            R += dmaW(s + 5)
            issued.append(f"W{s+5}")
        if R:
            A.extend(guarded(R))
    A("s_endpgm")

    A("K1_PREP:")
    nbar = 0
    A("s_sub_u32 s25, s25, 28")
    A("s_lshl_b32 s25, s25, 3")
    A("s_add_u32 s25, s25, s24")
    PX = 0
    PWD = 65536
    for half in range(2):
        A(f"s_add_u32 s26, s3, {4*half}")
        A("s_lshl_b32 s27, s26, 1")
        A("v_xor_b32 v2, s27, v1")
        A("v_lshlrev_b32 v2, 4, v2")
        A("s_lshl_b32 s28, s25, 16")
        A("s_lshl_b32 s27, s26, 13")
        A("s_add_u32 s28, s28, s27")
        A(f"s_add_u32 m0, s27, {PX}")
        for i in range(4):
            A(f"buffer_load_dwordx4 v2, s[4:7], s28 offen offset:{i*1024} lds")
        A(f"s_add_u32 m0, s27, {PX+4096}")
        A("s_add_u32 s28, s28, 4096")
        for i in range(4):
            A(f"buffer_load_dwordx4 v2, s[4:7], s28 offen offset:{i*1024} lds")
    A("v_lshrrev_b32 v3, 5, v1")
    A("s_and_b32 s26, s3, 1")
    A("s_lshl_b32 s26, s26, 1")
    A("v_add_u32 v4, s26, v3")
    A("v_lshlrev_b32 v4, 2, v4")
    A("v_and_b32 v5, 31, v1")
    A("v_xor_b32 v5, v5, v4")
    A("v_lshlrev_b32 v5, 4, v5")
    A("v_lshl_add_u32 v5, v3, 10, v5")
    A("s_lshr_b32 s26, s25, 1")
    A("s_and_b32 s27, s25, 1")
    A(f"s_mul_i32 s28, s26, {112*1024}")
    A("s_lshl_b32 s29, s27, 9")
    A("s_add_u32 s28, s28, s29")
    A("s_lshl_b32 s29, s3, 11")
    A("s_add_u32 s28, s28, s29")
    A("s_lshl_b32 s29, s3, 10")
    for r in range(14):
        A(f"s_add_u32 m0, s29, {PWD + r*4096}")
        A("buffer_load_dwordx4 v5, s[20:23], s28 offen lds")
        if r < 13:
            A("s_add_u32 s28, s28, 8192")
    A("v_lshrrev_b32 v6, 3, v1")
    A("s_lshl_b32 s29, s3, 3")
    A("v_add_u32 v6, s29, v6")
    A("v_lshlrev_b32 v7, 4, v6")
    A(f"global_load_dwordx4 v[8:11], v7, s[{P['gw']}:{P['gw']+1}]")
    A(f"global_load_dwordx4 v[12:15], v7, s[{P['gw']}:{P['gw']+1}] offset:512")
    A("s_mov_b32 s30, 0x05040100")
    A("s_mov_b32 s31, 0x07060302")
    A("v_and_b32 v3, 7, v1")
    A("v_lshlrev_b32 v4, 1, v3")
    A("v_xor_b32 v4, v4, v6")
    A("v_lshlrev_b32 v4, 4, v4")
    A("v_lshl_add_u32 v4, v3, 13, v4")
    A("v_lshlrev_b32 v16, 15, v6")
    A("v_lshl_add_u32 v16, v3, 4, v16")
    PG = 65536 + 57344 - 57344
    A("s_waitcnt vmcnt(16)")
    A("s_barrier"); nbar += 1
    for half in range(2):
        for i in range(8):
            A(f"ds_read_b128 v[{32+32*half+4*i}:{35+32*half+4*i}], v4 offset:{PX + i*1024 + half*512}")
    A("s_waitcnt vmcnt(0) lgkmcnt(0)")
    A("s_barrier"); nbar += 1
    PG = 0
    A("v_mul_u32_u24 v17, 2176, v3")
    A("v_lshl_add_u32 v17, v6, 2, v17")
    A("s_lshl_b32 s28, s25, 7")
    A(f"s_add_u32 s28, s28, {WS_UT:#x}")
    for half in range(2):
        R = 32 + 32 * half
        O = 96 + 32 * half
        gw = 8 + 4 * half
        for i in range(8):
            A(f"v_mov_b32 v{20+i}, 0")
        for d in range(4):
            for i in range(8):
                A(f"v_dot2c_f32_bf16 v{20+i}, v{R+4*i+d}, v{gw+d}")
        for e in range(8):
            for ip in range(4):
                A(f"v_perm_b32 v{O+4*e+ip}, v{R+4*(2*ip+1)+e//2}, v{R+4*(2*ip)+e//2}, s{30+(e&1)}")
        A("s_nop 2")
        for i in range(8):
            A(f"ds_write_b32 v17, v{20+i} offset:{PG + i*272 + half*128}")
        for e in range(8):
            A(f"s_add_u32 s29, s28, {e*4096 + half*32*32768}")
            A(f"buffer_store_dwordx4 v[{O+4*e}:{O+4*e+3}], v16, s[16:19], s29 offen")
    A("v_bfe_u32 v2, v1, 4, 1")
    A("v_lshrrev_b32 v3, 5, v1")
    A("v_bfe_u32 v4, v1, 2, 2")
    A("v_lshl_add_u32 v5, v3, 2, v4")
    A("v_lshlrev_b32 v5, 9, v5")
    A("v_lshl_add_u32 v5, v2, 5, v5")
    A("v_and_b32 v6, 3, v1")
    A("v_lshl_add_u32 v5, v6, 3, v5")
    A("v_xor_b32 v4, s3, v4")
    A("v_lshl_add_u32 v5, v4, 6, v5")
    A(f"v_add_u32 v5, {PWD}, v5")
    A("v_lshlrev_b32 v6, 4, v1")
    A("s_lshl_b32 s28, s27, 3")
    A("s_add_u32 s28, s28, s3")
    A("s_mul_i32 s28, s28, 112")
    A("s_mul_i32 s29, s26, 7")
    A("s_add_u32 s28, s28, s29")
    A("s_lshl_b32 s28, s28, 10")
    A(f"s_add_u32 s28, s28, {WS_WD:#x}")
    for half in range(2):
        for ks in range(7):
            r = 160 + 28 * half + 4 * ks
            for z in range(2):
                A(f"ds_read_b64_tr_b16 v[{r+2*z}:{r+2*z+1}], v5 offset:{(16*ks+8*z)*512 + half*256}")
    A("s_waitcnt lgkmcnt(0)")
    A("s_barrier"); nbar += 1
    for half in range(2):
        for ks in range(7):
            r = 160 + 28 * half + 4 * ks
            A(f"s_add_u32 s29, s28, {ks*1024 + half*4*112*1024}")
            A(f"buffer_store_dwordx4 v[{r}:{r+3}], v6, s[16:19], s29 offen")
    A("v_lshrrev_b32 v2, 2, v0")
    A("v_and_b32 v3, 3, v0")
    A("v_mul_u32_u24 v4, 272, v2")
    A("v_lshl_add_u32 v4, v3, 6, v4")
    for i in range(4):
        A(f"ds_read_b128 v[{32+4*i}:{35+4*i}], v4 offset:{PG + i*16}")
    A("s_waitcnt lgkmcnt(0)")
    for i in range(8):
        A(f"v_add_f32 v{32+i}, v{32+i}, v{40+i}")
    for i in range(4):
        A(f"v_add_f32 v{32+i}, v{32+i}, v{36+i}")
    A("v_add_f32 v32, v32, v34")
    A("v_add_f32 v33, v33, v35")
    A("v_add_f32 v32, v32, v33")
    A("v_add_f32_dpp v32, v32, v32 quad_perm:[1,0,3,2] row_mask:0xf bank_mask:0xf")
    A("v_add_f32_dpp v32, v32, v32 quad_perm:[2,3,0,1] row_mask:0xf bank_mask:0xf")
    A("v_cvt_pk_bf16_f32 v32, v32, v32")
    A("v_lshlrev_b32 v32, 16, v32")
    A(f"v_mul_f32 v32, {NLOG2E:#x}, v32")
    A("v_exp_f32 v32, v32")
    A("v_add_f32 v32, 1.0, v32")
    A("v_rcp_f32 v32, v32")
    A("v_cvt_pk_bf16_f32 v32, v32, v32")
    A("v_lshlrev_b32 v32, 16, v32")
    A("v_lshlrev_b32 v2, 2, v2")
    A("s_lshl_b32 s28, s25, 8")
    A(f"s_add_u32 s28, s28, {WS_G:#x}")
    A("buffer_store_dword v32, v2, s[16:19], s28 offen")
    for _ in range(17 - nbar):
        A("s_barrier")
    A("K1_END:")
    A("s_endpgm")
    return A.lines


K2_RED = 0
K2_AT = 49152
AT_PITCH = 192
K2_FLAG = 61440
K2_CH = 65536
CH_SIZE = 40960
C_KC = 0
C_K = 2048
KP = 4416
C_U = 2048 + 4 * 4416 + 64
UB = 144
U_COPY = 47 * UB + 16
assert U_COPY % 256 == 128 and C_U % 16 == 0
C_X = C_U + 2 * U_COPY + 64
assert C_X % 16 == 0 and C_X + 8192 <= CH_SIZE + 1024
K2_LDS = K2_CH + 2 * 43008


def gen_k2():
    A = Asm()
    CHS = 43008
    A("s_cmp_ge_u32 s2, 256")
    A("s_cbranch_scc1 K2_END")
    load_ptrs(A)
    A("v_and_b32 v1, 63, v0")
    A("v_lshrrev_b32 v2, 6, v0")
    A("v_readfirstlane_b32 s3, v2")
    A("s_and_b32 s24, s2, 7")
    A("s_lshr_b32 s25, s2, 3")
    A("s_lshr_b32 s26, s24, 1")
    A("s_lshl_b32 s26, s26, 3")
    A("s_lshr_b32 s29, s25, 2")
    A("s_add_u32 s26, s26, s29")
    A("s_and_b32 s27, s24, 1")
    A("s_lshl_b32 s27, s27, 2")
    A("s_and_b32 s30, s25, 3")
    A("s_add_u32 s27, s27, s30")
    A("s_add_u32 s28, s29, s30")
    A("s_and_b32 s28, s28, 3")
    A("s_waitcnt lgkmcnt(0)")
    srd(A, 16, "ws", WS_SIZE)
    srd(A, 4, "out", 0x200000)
    A("s_cmp_ge_u32 s3, 4")
    A("s_cbranch_scc1 K2_CONV")

    ACC = 128
    RING = 8
    A("v_lshlrev_b32 v2, 4, v1")
    A("v_add_u32 v3, 4096, v2")
    A(f"s_mul_i32 s12, s3, {28*1024}")
    A(f"s_mul_i32 s8, s27, {2*112*1024}")
    A("s_add_u32 s8, s8, s12")
    A(f"s_add_u32 s8, s8, {WS_WD:#x}")
    A(f"s_add_u32 s9, s8, {112*1024}")
    A(f"s_mul_i32 s10, s26, {2*112*1024}")
    A("s_add_u32 s10, s10, s12")
    A(f"s_add_u32 s11, s10, {112*1024}")

    def group_offsets():
        R = [f"s_mul_i32 s13, s28, {7*1024}"]
        for q in range(4):
            R.append(f"s_add_u32 s{20+q}, s{8+q}, s13")
        return R

    def loads(i):
        R = []
        for q in range(4):
            r = RING + 16 * i + 4 * q
            R.append(f"buffer_load_dwordx4 v[{r}:{r+3}], v{2 if i < 4 else 3}, s[16:19], s{20+q} offen offset:{(i%4)*1024}")
        return R
    A.extend(group_offsets())
    for i in range(7):
        A.extend(loads(i))
    A("s_barrier")
    for r in range(64):
        A(f"v_mov_b32 v{ACC+r}, 0")
    A("s_mov_b32 s31, 0")
    A("K2_LOOP:")
    A("s_add_u32 s28, s28, 1")
    A("s_and_b32 s28, s28, 3")
    A.extend(group_offsets())
    A("s_cmp_eq_u32 s31, 3")
    for q in range(4):
        A(f"s_cselect_b32 s{20+q}, {WS_SIZE:#x}, s{20+q}")
    for i in range(7):
        r = RING + 16 * i
        A("s_waitcnt vmcnt(24)")
        for na in range(2):
            for mb in range(2):
                c = ACC + 16 * (2 * na + mb)
                A(f"v_mfma_f32_32x32x16_bf16 v[{c}:{c+15}], v[{r+4*na}:{r+4*na+3}], v[{r+8+4*mb}:{r+11+4*mb}], v[{c}:{c+15}]")
        A.extend(loads(i))
    A("s_add_u32 s31, s31, 1")
    A("s_cmp_lt_u32 s31, 4")
    A("s_cbranch_scc1 K2_LOOP")
    A("s_and_b32 s12, s3, 1")
    A("s_lshr_b32 s13, s3, 1")
    A("s_lshl_b32 s14, s26, 6")
    A("s_lshl_b32 s15, s12, 5")
    A("s_add_u32 s14, s14, s15")
    A("v_and_b32 v4, 31, v1")
    A("v_lshlrev_b32 v5, 2, v4")
    A("s_lshl_b32 s15, s14, 2")
    A(f"s_add_u32 s15, s15, {WS_G:#x}")
    A("s_waitcnt vmcnt(0)")
    A("buffer_load_dword v6, v5, s[16:19], s15 offen")
    for q in range(4):
        A(f"s_cmp_eq_u32 s3, {q}")
        A(f"s_cbranch_scc1 K2_RW{q}")
        A(f"s_sub_u32 s20, s3, {q+1}")
        A("s_and_b32 s20, s20, 3")
        A("s_lshl_b32 s20, s20, 12")
        A("v_add_u32 v7, s20, v2")
        for rg in range(4):
            c = ACC + 16 * q + 4 * rg
            A(f"ds_write_b128 v7, v[{c}:{c+3}] offset:{K2_RED + q*12288 + rg*1024}")
        A(f"s_branch K2_RX{q}")
        A(f"K2_RW{q}:")
        for r in range(16):
            A(f"v_mov_b32 v{64+r}, v{ACC+16*q+r}")
        A(f"K2_RX{q}:")
    A("s_waitcnt lgkmcnt(0)")
    A("s_barrier")
    A("s_mul_i32 s20, s3, 12288")
    A("v_add_u32 v7, s20, v2")
    for sidx in range(3):
        for rg in range(4):
            r = 8 + 16 * sidx + 4 * rg
            A(f"ds_read_b128 v[{r}:{r+3}], v7 offset:{K2_RED + sidx*4096 + rg*1024}")
    A("v_bfe_u32 v80, v1, 2, 2")
    A("v_lshrrev_b32 v81, 5, v1")
    A("v_lshl_add_u32 v80, v81, 2, v80")
    A("s_lshl_b32 s20, s13, 5")
    A("v_add_u32 v80, s20, v80")
    A(f"v_mul_u32_u24 v80, {AT_PITCH}, v80")
    A("v_bfe_u32 v82, v1, 4, 1")
    A("v_lshl_add_u32 v80, v82, 5, v80")
    A("v_and_b32 v82, 3, v1")
    A("v_lshl_add_u32 v80, v82, 3, v80")
    A("s_lshl_b32 s20, s12, 6")
    A("v_add_u32 v80, s20, v80")
    for rg in range(4):
        A(f"ds_read_b64_tr_b16 v[{84+2*rg}:{85+2*rg}], v80 offset:{K2_AT + rg*8*AT_PITCH}")
    A("v_lshlrev_b32 v83, 10, v4")
    A("v_lshl_add_u32 v83, v81, 4, v83")
    A("s_lshl_b32 s20, s14, 10")
    A("s_lshl_b32 s21, s27, 7")
    A("s_add_u32 s20, s20, s21")
    A("s_lshl_b32 s21, s13, 6")
    A("s_add_u32 s20, s20, s21")
    A("s_waitcnt vmcnt(0) lgkmcnt(0)")
    A("v_sub_f32 v5, 1.0, v6")
    A("v_cvt_pk_bf16_f32 v5, v5, v5")
    A("v_lshlrev_b32 v5, 16, v5")
    for r in range(16):
        A(f"v_add_f32 v{64+r}, v{64+r}, v{8+r}")
        A(f"v_add_f32 v{24+r}, v{24+r}, v{40+r}")
    for r in range(16):
        A(f"v_add_f32 v{64+r}, v{64+r}, v{24+r}")
    for r in range(16):
        src = 84 + r // 2
        if r & 1:
            A(f"v_and_b32 v{8+r}, 0xffff0000, v{src}")
        else:
            A(f"v_lshlrev_b32 v{8+r}, 16, v{src}")
    for r in range(16):
        A(f"v_mul_f32 v{64+r}, v5, v{64+r}")
    for r in range(16):
        A(f"v_fmac_f32 v{64+r}, v6, v{8+r}")
    for r in range(8):
        A(f"v_cvt_pk_bf16_f32 v{96+r}, v{64+2*r}, v{65+2*r}")
    for pr in range(2):
        b = 96 + 4 * pr
        A(f"v_permlane32_swap_b32 v{b}, v{b+2}")
        A(f"v_permlane32_swap_b32 v{b+1}, v{b+3}")
        A(f"buffer_store_dwordx4 v[{b}:{b+3}], v83, s[4:7], s20 offen offset:{pr*32}")
    A("s_endpgm")

    A("K2_CONV:")
    A("s_sub_u32 s3, s3, 4")
    A("s_lshr_b32 s69, s3, 1")
    A("s_and_b32 s71, s3, 1")
    A("s_lshl_b32 s70, s2, 1")
    A("s_add_u32 s70, s70, s69")
    A(f"s_mul_i32 s72, s69, {CHS}")
    A(f"s_add_u32 s72, s72, {K2_CH}")
    A("v_lshlrev_b32 v2, 4, v1")
    A(f"s_mul_i32 s73, s70, {KC_PITCH}")
    A("s_mul_i32 s74, s71, 768")
    A("s_add_u32 s73, s73, s74")
    A(f"s_add_u32 s73, s73, {WS_KC:#x}")
    A("buffer_load_dwordx4 v[8:11], v2, s[16:19], s73 offen")
    A("s_lshl_b32 s73, s70, 12")
    A("s_lshl_b32 s75, s71, 11")
    A("s_add_u32 s73, s73, s75")
    A(f"s_add_u32 s73, s73, {WS_UT:#x}")
    A("buffer_load_dwordx4 v[12:15], v2, s[16:19], s73 offen")
    A("buffer_load_dwordx4 v[16:19], v2, s[16:19], s73 offen offset:1024")
    A("v_mov_b32 v20, 0\nv_mov_b32 v21, 0\nv_mov_b32 v22, 0\nv_mov_b32 v23, 0")
    A("v_lshlrev_b32 v3, 2, v1")
    A(f"ds_write_b32 v3, v20 offset:{K2_FLAG}")
    A(f"s_mul_i32 s73, s71, {U_COPY}")
    A("s_add_u32 s73, s73, s72")
    A("v_add_u32 v4, s73, v2")
    A(f"ds_write_b128 v4, v[20:23] offset:{C_U}")
    A(f"ds_write_b128 v4, v[20:23] offset:{C_U+1024}")
    A(f"ds_write_b128 v4, v[20:23] offset:{C_U+2176-1024}")
    A(f"s_mul_i32 s73, s71, {2*KP}")
    A("s_add_u32 s73, s73, s72")
    A("v_and_b32 v4, 7, v1")
    A("v_lshl_add_u32 v4, v4, 4, s73")
    A(f"ds_write_b128 v4, v[20:23] offset:{C_K}")
    A(f"ds_write_b128 v4, v[20:23] offset:{C_K+KP}")
    A("s_waitcnt lgkmcnt(0)")
    A("s_barrier")
    GA = 32
    ZIDX = 767 + 1
    A("s_lshl_b32 s73, s71, 10")
    A("v_lshl_add_u32 v4, v1, 3, s73")
    A(f"s_sub_u32 s74, s72, {2*(0x4300-128)}")
    for g in range(2):
        for rho in range(-3, 8):
            d = GA + 11 * g + rho + 3
            A(f"v_add_u32 v5, {512*g+rho}, v4")
            A("v_cvt_f32_i32 v6, v5")
            A("v_cvt_pk_bf16_f32 v6, v6, v6")
            A("v_and_b32 v6, 0xffff, v6")
            A(f"v_lshl_add_u32 v{d}, v6, 1, s74")
            if g == 0:
                A("v_lshl_add_u32 v6, v5, 1, s72")
                A("v_cmp_gt_i32 vcc, 0x80, v5")
                A(f"v_cndmask_b32 v{d}, v{d}, v6, vcc")
                if rho < 0:
                    A(f"v_mov_b32 v6, s72")
                    A(f"v_add_u32 v6, {2*ZIDX}, v6")
                    A("v_cmp_gt_i32 vcc, 0, v5")
                    A(f"v_cndmask_b32 v{d}, v{d}, v6, vcc")
    A("s_mul_i32 s73, s71, 768")
    A("s_add_u32 s73, s73, s72")
    A("v_add_u32 v4, s73, v2")
    A("v_mov_b32 v5, s72")
    A(f"ds_write_b32 v5, v20 offset:{2*ZIDX}")
    A("s_mov_b32 exec_hi, 0xffff")
    A("s_waitcnt vmcnt(2)")
    A(f"ds_write_b128 v4, v[8:11] offset:{C_KC}")
    A("s_mov_b64 exec, -1")
    A("s_lshl_b32 s73, s71, 7")
    A("v_add_u32 v4, s73, v1")
    A("v_lshrrev_b32 v5, 3, v4")
    A("v_add_u32 v5, v5, v4")
    A("v_lshl_add_u32 v5, v5, 4, s72")
    A("v_add_u32 v4, 1, v4")
    A("v_lshrrev_b32 v6, 3, v4")
    A("v_add_u32 v6, v6, v4")
    A("v_lshl_add_u32 v6, v6, 4, s72")
    A("s_waitcnt vmcnt(0)")
    for i in range(2):
        r = 12 + 4 * i
        o = C_U + 15 * UB + i * 8 * UB
        A(f"ds_write_b128 v5, v[{r}:{r+3}] offset:{o + U_COPY}")
        A(f"ds_write_b64 v5, v[{r}:{r+1}] offset:{o + 8}")
        A(f"ds_write_b64 v6, v[{r+2}:{r+3}] offset:{o}")

    nsync = [0]

    def pair_sync():
        nsync[0] += 1
        n = nsync[0]
        R = ["s_waitcnt lgkmcnt(0)",
             f"v_mov_b32 v7, {n}",
             f"ds_write_b32 v24, v7 offset:{K2_FLAG}",
             "s_mov_b32 s76, 0x40000",
             f"K2_SY{n}:",
             f"ds_read_b32 v7, v25 offset:{K2_FLAG}",
             "s_sub_u32 s76, s76, 1",
             f"s_cbranch_scc1 K2_SZ{n}",
             "s_waitcnt lgkmcnt(0)",
             "v_readfirstlane_b32 s73, v7",
             f"s_cmp_lt_u32 s73, {n}",
             f"s_cbranch_scc1 K2_SY{n}",
             f"K2_SZ{n}:",
             "s_waitcnt lgkmcnt(0)"]
        return R
    A("s_lshl_b32 s73, s3, 2")
    A("v_mov_b32 v24, s73")
    A("s_xor_b32 s73, s73, 4")
    A("v_mov_b32 v25, s73")
    A.extend(pair_sync())
    GV = 64
    for k in range(22):
        A(f"ds_read_u16 v{GV+k}, v{GA+k}")
    A("s_lshl_b32 s73, s71, 11")
    A("s_add_u32 s73, s73, s72")
    A("v_add_u32 v4, s73, v2")
    for g in range(2):
        A(f"s_waitcnt lgkmcnt({11 if g == 0 else 4})")
        for b in range(4):
            for i in range(4):
                x = b + 3 - 2 * i
                A(f"v_lshl_or_b32 v{96+16*g+4*b+i}, v{GV+11*g+x+3}, 16, v{GV+11*g+x+4}")
        for b in range(4):
            A(f"ds_write_b128 v4, v[{96+16*g+4*b}:{99+16*g+4*b}] offset:{C_K + b*KP + 7*16 + g*1024}")
    A.extend(pair_sync())
    A("v_and_b32 v4, 3, v1")
    A(f"v_mul_u32_u24 v4, {KP}, v4")
    A("v_bfe_u32 v5, v1, 2, 3")
    A("v_lshrrev_b32 v6, 5, v1")
    A("v_sub_u32 v5, v5, v6")
    A("v_lshl_add_u32 v4, v5, 4, v4")
    A("s_lshl_b32 s73, s71, 10")
    A("s_add_u32 s73, s73, s72")
    A(f"s_add_u32 s73, s73, {C_K + 16}")
    A("v_add_u32 v26, s73, v4")
    A("v_and_b32 v4, 1, v1")
    A(f"v_mul_u32_u24 v4, {U_COPY}, v4")
    A("v_bfe_u32 v5, v1, 1, 4")
    A(f"v_mul_u32_u24 v5, {UB}, v5")
    A("v_add_u32 v4, v4, v5")
    A("v_lshl_add_u32 v4, v6, 4, v4")
    A(f"s_mul_i32 s73, s71, {8*UB}")
    A("s_sub_u32 s73, s72, s73")
    A(f"s_add_u32 s73, s73, {C_U + 15*UB}")
    A("v_add_u32 v27, s73, v4")
    AC = 128
    for r in range(32):
        A(f"v_mov_b32 v{AC+r}, 0")
    FR = [32, 48, 64, 80]

    def creads(ks):
        f = FR[ks]
        return [f"ds_read_b128 v[{f}:{f+3}], v26 offset:{(3-ks)*32}",
                f"ds_read_b128 v[{f+4}:{f+7}], v27 offset:{ks*32}",
                f"ds_read_b128 v[{f+8}:{f+11}], v27 offset:{ks*32+16*UB}",
                f"ds_read_b128 v[{f+12}:{f+15}], v26 offset:{(3-ks)*32+2048}"]

    def cmf(ks):
        f = FR[ks]
        return [f"v_mfma_f32_32x32x16_bf16 v[{AC}:{AC+15}], v[{f}:{f+3}], v[{f+4}:{f+7}], v[{AC}:{AC+15}]",
                f"v_mfma_f32_32x32x16_bf16 v[{AC+16}:{AC+31}], v[{f}:{f+3}], v[{f+8}:{f+11}], v[{AC+16}:{AC+31}]",
                f"v_mfma_f32_32x32x16_bf16 v[{AC+16}:{AC+31}], v[{f+12}:{f+15}], v[{f+4}:{f+7}], v[{AC+16}:{AC+31}]"]
    A.extend(creads(0))
    A.extend(creads(1))
    A("s_mov_b32 s31, 0")
    A("K2_CL:")
    for ks in range(4):
        if ks == 2:
            A("v_add_u32 v26, 128, v26")
            A(f"v_subrev_u32 v27, {UB}, v27")
        A("s_waitcnt lgkmcnt(4)")
        A.extend(interleave(cmf(ks), creads((ks + 2) % 4), per=2))
    A("s_add_u32 s31, s31, 1")
    A("s_cmp_lt_u32 s31, 8")
    A("s_cbranch_scc1 K2_CL")
    A("s_waitcnt lgkmcnt(0)")
    A("s_lshl_b32 s73, s71, 12")
    A("s_add_u32 s73, s73, s72")
    A("v_add_u32 v4, s73, v2")
    A("s_xor_b32 s74, s71, 1")
    A("s_lshl_b32 s74, s74, 12")
    A("s_add_u32 s74, s74, s72")
    A("v_add_u32 v5, s74, v2")
    A("s_cmp_eq_u32 s71, 0")
    A("s_cbranch_scc1 K2_EX")
    for r in range(16):
        A(f"v_swap_b32 v{AC+r}, v{AC+16+r}")
    A("K2_EX:")
    for rg in range(4):
        A(f"ds_write_b128 v4, v[{AC+16+4*rg}:{AC+19+4*rg}] offset:{C_X + rg*1024}")
    A.extend(pair_sync())
    for rg in range(4):
        A(f"ds_read_b128 v[{32+4*rg}:{35+4*rg}], v5 offset:{C_X + rg*1024}")
    A("v_bfe_u32 v6, v1, 1, 4")
    A("v_lshlrev_b32 v6, 7, v6")
    A("v_and_b32 v7, 1, v1")
    A("v_lshl_add_u32 v6, v7, 3, v6")
    A("v_lshrrev_b32 v7, 5, v1")
    A("v_lshl_add_u32 v6, v7, 4, v6")
    A("s_lshl_b32 s73, s71, 11")
    A("s_add_u32 s73, s73, s72")
    A("v_add_u32 v6, s73, v6")
    A("v_add_u32 v7, s73, v2")
    A("s_waitcnt lgkmcnt(0)")
    for r in range(16):
        A(f"v_add_f32 v{AC+r}, v{AC+r}, v{32+r}")
    for r in range(8):
        A(f"v_cvt_pk_bf16_f32 v{48+r}, v{AC+2*r}, v{AC+2*r+1}")
    for rg in range(4):
        A(f"ds_write_b64 v6, v[{48+2*rg}:{49+2*rg}] offset:{C_K + rg*32}")
    A("s_waitcnt lgkmcnt(0)")
    A(f"ds_read_b128 v[56:59], v7 offset:{C_K}")
    A(f"ds_read_b128 v[60:63], v7 offset:{C_K+1024}")
    A("s_lshl_b32 s73, s70, 12")
    A("s_lshl_b32 s74, s71, 11")
    A("s_add_u32 s73, s73, s74")
    A(f"s_add_u32 s73, s73, {WS_AT:#x}")
    A("s_waitcnt lgkmcnt(0)")
    A("buffer_store_dwordx4 v[56:59], v2, s[16:19], s73 offen sc0 sc1")
    A("buffer_store_dwordx4 v[60:63], v2, s[16:19], s73 offen offset:1024 sc0 sc1")
    A("s_waitcnt vmcnt(0)")
    A("v_mov_b32 v4, 0")
    A("v_mov_b32 v5, 1")
    A("s_mov_b64 exec, 1")
    A(f"ds_add_rtn_u32 v6, v4, v5 offset:{K2_FLAG+64}")
    A("s_waitcnt lgkmcnt(0)")
    A("v_readfirstlane_b32 s73, v6")
    A("s_cmp_eq_u32 s73, 3")
    A("s_cbranch_scc0 K2_NOSIG")
    A("s_lshr_b32 s73, s2, 5")
    A("s_lshl_b32 s73, s73, 5")
    A("v_mov_b32 v4, s73")
    A(f"global_atomic_add v4, v5, s[{P['dbg']}:{P['dbg']+1}] sc1")
    A("K2_NOSIG:")
    A("s_lshl_b32 s73, s27, 5")
    A("v_mov_b32 v4, s73")
    A("s_mov_b32 s76, 0x40000")
    A("K2_POLL:")
    A(f"global_load_dword v6, v4, s[{P['dbg']}:{P['dbg']+1}] sc0 sc1")
    A("s_waitcnt vmcnt(0)")
    A("v_readfirstlane_b32 s73, v6")
    A("s_cmp_ge_u32 s73, 32")
    A("s_cbranch_scc1 K2_GOT")
    A("s_sleep 2")
    A("s_sub_u32 s76, s76, 1")
    A("s_cbranch_scc0 K2_POLL")
    A("K2_GOT:")
    A("s_mov_b64 exec, -1")
    A("v_lshrrev_b32 v4, 3, v1")
    A("v_and_b32 v5, 7, v1")
    A("v_lshlrev_b32 v6, 12, v4")
    A("v_lshl_add_u32 v6, v5, 4, v6")
    A("s_lshl_b32 s73, s27, 18")
    A("s_lshl_b32 s74, s3, 16")
    A("s_add_u32 s73, s73, s74")
    A("s_lshl_b32 s74, s26, 7")
    A("s_add_u32 s73, s73, s74")
    A(f"s_add_u32 s73, s73, {WS_AT:#x}")
    A("s_add_u32 s74, s73, 32768")
    A("buffer_load_dwordx4 v[8:11], v6, s[16:19], s73 offen sc0 sc1")
    A("buffer_load_dwordx4 v[12:15], v6, s[16:19], s74 offen sc0 sc1")
    A(f"v_mul_u32_u24 v4, {AT_PITCH}, v4")
    A("v_lshl_add_u32 v4, v5, 4, v4")
    A(f"s_mul_i32 s73, s3, {16*AT_PITCH}")
    A("v_add_u32 v4, s73, v4")
    A("s_waitcnt vmcnt(0)")
    A(f"ds_write_b128 v4, v[8:11] offset:{K2_AT}")
    A(f"ds_write_b128 v4, v[12:15] offset:{K2_AT + 8*AT_PITCH}")
    A("s_waitcnt lgkmcnt(0)")
    A("s_barrier")
    A("K2_END:")
    A("s_endpgm")
    return A.lines


def main(path):
    hdr = open("cdna_kernels/" + NAME + ".s.ref").read().split("\n")
    hdr = [l for l in hdr if l.startswith(";") and "@launch" not in l and "Override launch" not in l and "grid=ceil" not in l]
    k1, d1 = kernel_text("ssm_k1_kernel", gen_k1())
    k2, d2 = kernel_text("ssm_k2_kernel", gen_k2())
    out = hdr + [
        "; @launch kernel=ssm_k1_kernel grid=(256,1,1) block=(512,1,1) lds=163840",
        f"; @launch kernel=ssm_k2_kernel grid=(256,1,1) block=(512,1,1) lds={K2_LDS}",
        '.amdgcn_target "amdgcn-amd-amdhsa--gfx950"',
        ".text", k1, k2,
        '.section .rodata,"a"', ".p2align 6", d1, ".p2align 6", d2, ""]
    open(path, "w").write("\n".join(out))


if __name__ == "__main__":
    main(sys.argv[1] if len(sys.argv) > 1 else "cdna_kernels/" + NAME + ".s")
```

```python
import sys
from asmlib import *

NAME = "gated_mix__ssm_conv_s4__glu_gated_glu__prompt"

WS_H = 0x0
WS_WD = 0x700000
WS_UT = 0x900000
WS_AT = 0xB00000
WS_KC = 0xD00000
WS_G = 0xE00000
WS_SIZE = 0x1000000
KC_PITCH = 1536

LOG2E = 0x3fb8aa3b
NLOG2E = 0xbfb8aa3b
INV2PI = 0x3e22f983

P = {n: 32 + 2 * i for i, n in enumerate(
    ["u", "are", "aim", "bre", "bim", "cre", "cim", "ldt", "dsk", "bx", "wg", "wu", "wd", "gw", "out", "dbg", "ws"])}


STAMP = False
OPT = dict(rot1=0, rot2=0)
WS_FL = 0xE10000
WS_ST = 0xF00000


def stamp(A, i):
    if STAMP:
        A("s_memtime s[98:99]")
        A("s_waitcnt lgkmcnt(0)")
        A(f"s_mov_b32 s{84+i}, s98")


def stamp_begin(A):
    if STAMP:
        for i in range(12):
            A(f"s_mov_b32 s{84+i}, 0")
        A("s_memrealtime s[96:97]")
        stamp(A, 0)
        stamp(A, 9)


def stamp_end(A, kern):
    if STAMP:
        A("s_mov_b64 exec, -1")
        stamp(A, 11)
        A("s_memrealtime s[98:99]")
        A("s_waitcnt lgkmcnt(0)")
        for i in range(12):
            A(f"v_mov_b32 v{8+i}, s{84+i}")
        A("v_mov_b32 v20, s96")
        A("v_mov_b32 v21, s98")
        A("s_getreg_b32 s98, hwreg(HW_REG_XCC_ID)")
        A("v_mov_b32 v22, s98")
        A("v_mov_b32 v23, 0")
        A("v_lshrrev_b32 v2, 6, v0")
        A("v_lshlrev_b32 v2, 6, v2")
        A("s_lshl_b32 s98, s2, 9")
        A(f"s_add_u32 s98, s98, {WS_ST + kern*256*512:#x}")
        A("s_mov_b64 exec, 1")
        for i in range(4):
            A(f"buffer_store_dwordx4 v[{8+4*i}:{11+4*i}], v2, s[16:19], s98 offen offset:{16*i}")


def load_ptrs(A):
    A("s_load_dwordx16 s[32:47], s[0:1], 0")
    A("s_load_dwordx16 s[48:63], s[0:1], 64")
    A("s_load_dwordx2 s[64:65], s[0:1], 128")


def srd(A, d, ptr, nbytes):
    A(f"s_mov_b32 s{d}, s{P[ptr]}")
    A(f"s_mov_b32 s{d+1}, s{P[ptr]+1}")
    A(f"s_mov_b32 s{d+2}, {nbytes:#x}")
    A(f"s_mov_b32 s{d+3}, 0x20000")


K1_X = 0
K1_W = 49152
K1_SCR0 = 131072
K1_SCR1 = 32768
SCR_PITCH = 528
P_L1 = [0, 1, 2, 3, 4, 5, 6, 7, 256, 258, 260, 262, 512, 516, 768, 772, 1024, 1280, 1536, 1792, 2048]


def cmul(dr, di, ar, ai, br, bi, t0, t1):
    return [f"v_mul_f32 v{t0}, v{ai}, v{bi}",
            f"v_mul_f32 v{t1}, v{ai}, v{br}",
            f"v_fma_f32 v{di}, v{ar}, v{bi}, v{t1}",
            f"v_fma_f32 v{dr}, v{ar}, v{br}, -v{t0}"]


def kgen_parts():
    L = []
    L.append("s_lshl_b32 s73, s70, 8")
    L.append("s_lshl_b32 s74, s71, 7")
    L.append("s_add_u32 s73, s73, s74")
    L.append("v_lshl_add_u32 v2, v1, 1, s73")
    L.append("s_lshl_b32 s73, s70, 1")
    L.append("v_mov_b32 v3, s73")
    for i, n in enumerate(["are", "aim", "bre", "bim", "cre", "cim"]):
        L.append(f"global_load_ushort v{10+i}, v2, s[{P[n]}:{P[n]+1}]")
    L.append(f"global_load_ushort v16, v3, s[{P['ldt']}:{P['ldt']+1}]")
    L.append(f"global_load_ushort v17, v3, s[{P['dsk']}:{P['dsk']+1}]")
    NLOADS = 8
    G = []
    for i in range(8):
        G.append(f"v_lshlrev_b32 v{10+i}, 16, v{10+i}")
    G.append(f"v_mul_f32 v16, {LOG2E:#x}, v16")
    G.append("v_exp_f32 v16, v16")
    G.append("v_cvt_pk_bf16_f32 v16, v16, v16")
    G.append("v_lshlrev_b32 v16, 16, v16")
    G.append("v_mul_f32 v10, v16, v10")
    G.append("v_mul_f32 v11, v16, v11")
    G.append(f"v_mul_f32 v10, {LOG2E:#x}, v10")
    G.append(f"v_mul_f32 v11, {INV2PI:#x}, v11")
    G.append("v_mul_f32 v12, v16, v12")
    G.append("v_mul_f32 v13, v16, v13")
    G += cmul(18, 19, 14, 15, 12, 13, 20, 21)
    for (m, d) in ((1.0, 22), (8.0, 24), (256.0, 26)):
        import struct
        mb = struct.unpack("<I", struct.pack("<f", m))[0]
        G.append(f"v_mul_f32 v20, {mb:#x}, v10")
        G.append(f"v_mul_f32 v21, {mb:#x}, v11")
        G.append("v_exp_f32 v20, v20")
        G.append("v_fract_f32 v21, v21")
        G.append(f"v_cos_f32 v{d}, v21")
        G.append(f"v_sin_f32 v{d+1}, v21")
        G.append(f"v_mul_f32 v{d}, v20, v{d}")
        G.append(f"v_mul_f32 v{d+1}, v20, v{d+1}")
    PB = 64
    QB = 96

    def packP(row, r, i):
        return f"v_cvt_pk_bf16_f32 v{PB+row}, v{r}, -v{i}"

    def packQ(row, r, i):
        return f"v_cvt_pk_bf16_f32 v{QB+row}, v{r}, v{i}"
    Pc = []
    Pc.append(packP(0, 18, 19))
    cur = (18, 19)
    keep = {}
    free = [(28, 29), (30, 31), (32, 33), (34, 35), (36, 37), (38, 39), (40, 41)]
    for i in range(1, 8):
        d = free[i - 1]
        Pc += cmul(d[0], d[1], cur[0], cur[1], 22, 23, 20, 21)
        Pc.append(packP(i, *d))
        keep[i] = d
        cur = d
    for i, row in ((2, 9), (4, 10), (6, 11)):
        d = keep[i]
        Pc += cmul(d[0], d[1], d[0], d[1], 26, 27, 20, 21)
        Pc.append(packP(row, *d))
    for row in (13, 15):
        d = keep[4]
        Pc += cmul(d[0], d[1], d[0], d[1], 26, 27, 20, 21)
        Pc.append(packP(row, *d))
    for a, row in ((1, 8), (2, 12), (3, 14), (4, 16), (5, 17), (6, 18), (7, 19), (8, 20)):
        Pc += cmul(18, 19, 18, 19, 26, 27, 20, 21)
        Pc.append(packP(row, 18, 19))
    Qc = []
    Qc.append(f"v_mov_b32 v{QB}, 0x3f80")
    Qc.append(packQ(1, 24, 25))
    Qc += cmul(42, 43, 24, 25, 24, 25, 44, 45)
    Qc.append(packQ(2, 42, 43))
    for j in range(3, 32):
        Qc += cmul(42, 43, 42, 43, 24, 25, 44, 45)
        Qc.append(packQ(j, 42, 43))
    while Pc or Qc:
        if Qc:
            G.append(Qc.pop(0))
        if Pc:
            G.append(Pc.pop(0))
    W = []
    W.append("s_lshl_b32 s73, s71, 8")
    W.append("s_add_u32 s73, s73, s72")
    W.append("v_lshl_add_u32 v2, v1, 2, s73")
    for r in range(21):
        W.append(f"ds_write_b32 v2, v{PB+r} offset:{r*SCR_PITCH}")
    for r in range(32):
        W.append(f"ds_write_b32 v2, v{QB+r} offset:{(21+r)*SCR_PITCH}")
    W.append("s_waitcnt lgkmcnt(0)")
    M = []
    M.append("v_and_b32 v2, 15, v1")
    M.append("v_lshrrev_b32 v3, 4, v1")
    M.append(f"v_mul_u32_u24 v4, {SCR_PITCH}, v2")
    M.append("v_lshl_add_u32 v4, v3, 4, v4")
    M.append("v_add_u32 v4, s72, v4")
    M.append(f"s_mul_i32 s73, s71, {16*SCR_PITCH}")
    M.append(f"s_add_u32 s73, s73, {21*SCR_PITCH}")
    M.append("v_add_u32 v5, s73, v4")
    for ks in range(8):
        M.append(f"ds_read_b128 v[{128+12*ks}:{131+12*ks}], v4 offset:{ks*64}")
        M.append(f"ds_read_b128 v[{132+12*ks}:{135+12*ks}], v4 offset:{ks*64+16*SCR_PITCH}")
        M.append(f"ds_read_b128 v[{136+12*ks}:{139+12*ks}], v5 offset:{ks*64}")
    M.append("v_lshl_add_u32 v6, s71, 6, v1")
    M.append("v_cmp_eq_u32 vcc, 0, v6")
    M.append("v_cndmask_b32 v48, 0, v17, vcc")
    for r in (49, 50, 51, 52, 53, 54, 55):
        M.append(f"v_mov_b32 v{r}, 0")
    M.append("v_lshl_add_u32 v6, s71, 4, v2")
    M.append("v_lshlrev_b32 v7, 3, v6")
    M.append("v_lshl_add_u32 v7, v3, 2, v7")
    M.append("v_lshlrev_b32 v8, 2, v6")
    M.append("v_add_u32 v8, 256, v8")
    M.append("v_cmp_eq_u32 vcc, 2, v3")
    M.append("v_cndmask_b32 v7, v7, v8, vcc")
    M.append("v_lshlrev_b32 v8, 1, v6")
    M.append("v_add_u32 v8, 384, v8")
    M.append("v_cmp_eq_u32 vcc, 3, v3")
    M.append("v_cndmask_b32 v7, v7, v8, vcc")
    M.append("v_cndmask_b32 v8, 2, 64, vcc")
    M.append("v_add_u32 v8, v7, v8")
    M.append("v_lshlrev_b32 v7, 1, v7")
    M.append("v_lshlrev_b32 v8, 1, v8")
    M.append("v_lshl_add_u32 v9, v3, 7, v6")
    M.append("v_add_u32 v9, 512, v9")
    M.append("v_lshlrev_b32 v9, 1, v9")
    M.append("v_mov_b32 v56, 0x2000000")
    M.append("v_cmp_gt_u32 vcc, 2, v3")
    M.append("v_cndmask_b32 v9, v56, v9, vcc")
    M.append(f"s_mul_i32 s73, s70, {KC_PITCH}")
    M.append(f"s_add_u32 s73, s73, {WS_KC:#x}")
    for ks in range(8):
        M.append(f"s_waitcnt lgkmcnt({min(15, 3*(7-ks))})")
        M.append(f"v_mfma_f32_16x16x32_bf16 v[48:51], v[{128+12*ks}:{131+12*ks}], v[{136+12*ks}:{139+12*ks}], v[48:51]")
        M.append(f"v_mfma_f32_16x16x32_bf16 v[52:55], v[{132+12*ks}:{135+12*ks}], v[{136+12*ks}:{139+12*ks}], v[52:55]")
    M.append("v_cvt_pk_bf16_f32 v48, v48, v49")
    M.append("v_cvt_pk_bf16_f32 v50, v50, v51")
    M.append("v_cvt_pk_bf16_f32 v52, v52, v53")
    M.append("v_cvt_pk_bf16_f32 v54, v54, v55")
    M.append("buffer_store_dword v48, v7, s[16:19], s73 offen")
    M.append("buffer_store_dword v50, v8, s[16:19], s73 offen")
    M.append("buffer_store_short v52, v9, s[16:19], s73 offen")
    M.append("buffer_store_short_d16_hi v52, v9, s[16:19], s73 offen offset:64")
    M.append("buffer_store_short v54, v9, s[16:19], s73 offen offset:128")
    M.append("buffer_store_short_d16_hi v54, v9, s[16:19], s73 offen offset:192")
    return L, NLOADS, G, W, M


def gen_k1():
    A = Asm()
    A("s_cmp_ge_u32 s2, 256")
    A("s_cbranch_scc1 K1_END")
    stamp_begin(A)
    load_ptrs(A)
    A("v_and_b32 v1, 63, v0")
    A("v_lshrrev_b32 v2, 6, v0")
    A("v_readfirstlane_b32 s3, v2")
    A("s_and_b32 s24, s2, 7")
    A("s_lshr_b32 s25, s2, 3")
    A("s_lshr_b32 s26, s24, 1")
    A("s_lshl_b32 s26, s26, 2")
    A("s_and_b32 s29, s25, 3")
    A("s_add_u32 s26, s26, s29")
    A("s_and_b32 s27, s24, 1")
    A("s_mul_i32 s27, s27, 7")
    A("s_lshr_b32 s30, s25, 2")
    A("s_add_u32 s27, s27, s30")
    A("s_lshl_b32 s28, s29, 1")
    A("s_add_u32 s28, s28, s30")
    A("s_and_b32 s28, s28, 7")
    if OPT["rot1"] == 0:
        A("s_mov_b32 s28, 0")
    elif OPT["rot1"] == 2:
        A("s_add_u32 s28, s29, s30")
        A("s_and_b32 s28, s28, 1")
        A("s_lshl_b32 s28, s28, 2")
    A("s_waitcnt lgkmcnt(0)")
    stamp(A, 10)
    srd(A, 4, "u", 0x200000)
    srd(A, 8, "wg", 0x1C0000)
    srd(A, 12, "wu", 0x1C0000)
    srd(A, 16, "ws", WS_SIZE)
    srd(A, 20, "wd", 0x1C0000)
    A("s_cmp_ge_u32 s3, 4")
    A("s_cbranch_scc1 K1_HELP")
    A("s_cmp_ge_u32 s25, 28")
    A("s_cbranch_scc1 K1_PREP")

    ACC = 128
    FA = [16, 40]
    A("v_and_b32 v2, 31, v1")
    A("v_lshrrev_b32 v3, 5, v1")
    A("v_bfe_u32 v4, v1, 1, 3")
    A("v_xor_b32 v4, v4, v3")
    A("v_lshlrev_b32 v2, 7, v2")
    for k in range(4):
        A(f"v_xor_b32 v5, {2*k}, v4")
        A(f"v_lshl_add_u32 v{8+k}, v5, 4, v2")
    A("v_bfe_u32 v2, v1, 4, 1")
    A("v_bfe_u32 v4, v1, 2, 2")
    A("v_lshl_add_u32 v5, v3, 3, v4")
    A("v_lshlrev_b32 v5, 8, v5")
    A("v_lshl_add_u32 v5, v2, 13, v5")
    A("v_and_b32 v6, 3, v1")
    A("v_lshl_add_u32 v5, v6, 3, v5")
    A(f"v_add_u32 v5, {K1_W}, v5")
    A("v_lshl_add_u32 v4, v4, 1, v2")
    A("s_lshl_b32 s29, s3, 1")
    A("v_xor_b32 v4, s29, v4")
    A("v_lshl_add_u32 v12, v4, 5, v5")
    A("v_xor_b32 v4, 1, v4")
    A("v_lshl_add_u32 v13, v4, 5, v5")
    for r in range(128):
        A(f"v_mov_b32 v{ACC+r}, 0")
    A(f"s_mov_b32 s29, {4*16384}")
    A("s_mov_b32 s30, 0")
    A("v_add_u32 v14, s29, v12")
    A("v_add_u32 v15, s29, v13")

    def reads(st, ks, xreg):
        f = FA[st]
        R = []
        R.append(f"ds_read_b128 v[{f+8}:{f+11}], v{xreg} offset:0")
        R.append(f"ds_read_b64_tr_b16 v[{f}:{f+1}], v14 offset:{(16*ks)*256}")
        R.append(f"ds_read_b64_tr_b16 v[{f+2}:{f+3}], v14 offset:{(16*ks+4)*256}")
        for mt in (1, 2, 3):
            R.append(f"ds_read_b128 v[{f+8+4*mt}:{f+11+4*mt}], v{xreg} offset:{mt*4096}")
        R.append(f"ds_read_b64_tr_b16 v[{f+4}:{f+5}], v15 offset:{(16*ks)*256}")
        R.append(f"ds_read_b64_tr_b16 v[{f+6}:{f+7}], v15 offset:{(16*ks+4)*256}")
        return R

    def mfmas(st):
        f = FA[st]
        return [f"v_mfma_f32_32x32x16_bf16 v[{ACC+16*(4*a+mt)}:{ACC+16*(4*a+mt)+15}], v[{f+4*a}:{f+4*a+3}], v[{f+8+4*mt}:{f+11+4*mt}], v[{ACC+16*(4*a+mt)}:{ACC+16*(4*a+mt)+15}]"
                for a in range(2) for mt in range(4)]

    A("s_barrier")
    stamp(A, 1)
    A.extend(reads(0, 0, 8))
    A("s_mov_b32 s31, 0")
    A("K1_LOOP:")
    for k in range(4):
        st = k & 1
        pre = []
        if k == 3:
            pre += ["s_add_u32 s30, s30, 16384", "s_cmp_eq_u32 s30, 49152", "s_cselect_b32 s30, 0, s30"]
        if k & 1:
            pre += ["s_add_u32 s29, s29, 16384", f"s_cmp_eq_u32 s29, {5*16384}", "s_cselect_b32 s29, 0, s29",
                    "v_add_u32 v14, s29, v12", "v_add_u32 v15, s29, v13"]
        pre += [f"v_add_u32 v7, s30, v{8+(k+1)%4}"]
        mm = mfmas(st)
        A("s_waitcnt lgkmcnt(0)")
        A(mm[0])
        if k & 1:
            A("s_barrier")
        A.extend(pre)
        A.extend(interleave(mm[1:], reads(1 - st, (k + 1) & 1, 7), per=2))
    A("s_add_u32 s31, s31, 1")
    A("s_cmp_lt_u32 s31, 8")
    A("s_cbranch_scc1 K1_LOOP")
    stamp(A, 2)
    A("s_waitcnt lgkmcnt(0)")
    A("v_lshlrev_b32 v2, 4, v1")
    A(f"s_mul_i32 s29, s26, {4*112*1024}")
    A("s_lshl_b32 s30, s27, 13")
    A("s_add_u32 s29, s29, s30")
    A("s_lshl_b32 s30, s3, 11")
    A("s_add_u32 s29, s29, s30")
    A(f"s_mov_b32 s66, {NLOG2E:#x}")
    for mt in range(4):
        for a in range(2):
            c = ACC + 16 * (4 * a + mt)
            for r in range(8):
                A(f"v_mul_f32 v{c+r}, s66, v{c+r}")
            for r in range(8):
                A(f"v_exp_f32 v{c+r}, v{c+r}")
            for r in range(8):
                A(f"v_add_f32 v{c+r}, 1.0, v{c+r}")
            for r in range(8):
                A(f"v_rcp_f32 v{c+r}, v{c+r}")
            for r in range(8):
                A(f"v_mul_f32 v{c+r}, v{c+r}, v{c+8+r}")
            for r in range(4):
                A(f"v_cvt_pk_bf16_f32 v{c+r}, v{c+2*r}, v{c+2*r+1}")
            A(f"buffer_store_dwordx4 v[{c}:{c+3}], v2, s[16:19], s29 offen offset:{a*1024}")
        if mt < 3:
            A(f"s_add_u32 s29, s29, {112*1024}")
    stamp_end(A, 0)
    A("s_endpgm")

    A("K1_HELP:")
    A("s_sub_u32 s3, s3, 4")
    A("s_lshr_b32 s69, s3, 1")
    A("s_lshl_b32 s70, s2, 1")
    A("s_add_u32 s70, s70, s69")
    A("s_and_b32 s71, s3, 1")
    A("s_cmp_eq_u32 s69, 0")
    A(f"s_mov_b32 s72, {K1_SCR1}")
    A(f"s_cselect_b32 s72, {K1_SCR0}, s72")
    L, NL, G, W, M = kgen_parts()
    A.extend(L)
    A("v_lshrrev_b32 v4, 4, v1")
    A("v_and_b32 v5, 15, v1")
    A("v_lshlrev_b32 v6, 2, v4")
    A("v_xor_b32 v5, v5, v6")
    A("v_mul_u32_u24 v6, 3584, v4")
    A("v_lshl_add_u32 v60, v5, 4, v6")
    A("v_xor_b32 v5, 2, v5")
    A("v_lshl_add_u32 v61, v5, 4, v6")
    A("s_lshl_b32 s75, s71, 2")
    A("v_add_u32 v4, s75, v4")
    A("v_and_b32 v5, 7, v1")
    A("v_xor_b32 v5, v5, v4")
    A("v_lshrrev_b32 v6, 3, v1")
    A("v_lshlrev_b32 v6, 10, v6")
    A("v_lshl_add_u32 v62, v5, 4, v6")
    A(f"s_mul_i32 s76, s3, {8*3584}")
    A("s_lshl_b32 s78, s27, 8")
    A("s_add_u32 s76, s76, s78")
    A("s_lshl_b32 s77, s26, 17")
    A("s_lshl_b32 s78, s3, 13")
    A("s_add_u32 s77, s77, s78")
    A("s_lshl_b32 s79, s3, 11")
    A("s_lshl_b32 s80, s3, 10")
    A("s_cmp_ge_u32 s25, 28")
    A("s_cselect_b32 s81, 1, 0")

    def dmaW(s):
        R = []
        R.append(f"s_add_u32 s82, s28, {s>>1}")
        R.append("s_and_b32 s82, s82, 7")
        R.append(f"s_mul_i32 s82, s82, {64*3584}")
        R.append("s_add_u32 s82, s82, s76")
        if s & 1:
            R.append(f"s_add_u32 s82, s82, {32*3584}")
        R.append(f"s_add_u32 s83, s82, {4*3584}")
        base = K1_W + ((s + 4) % 5) * 16384
        for gu in range(2):
            for i in range(2):
                R.append(f"s_add_u32 m0, s79, {base + gu*8192 + i*1024}")
                R.append(f"buffer_load_dwordx4 v{60+gu}, s[{8+4*gu}:{11+4*gu}], s{82+i} offen lds")
        return R

    def dmaX(c):
        R = []
        R.append(f"s_add_u32 s82, s28, {c}")
        R.append("s_and_b32 s82, s82, 7")
        R.append("s_lshl_b32 s82, s82, 7")
        R.append("s_add_u32 s82, s82, s77")
        base = K1_X + (c % 3) * 16384
        for i in range(4):
            R.append(f"s_add_u32 m0, s80, {base + i*4096}")
            R.append(f"buffer_load_dwordx4 v62, s[4:7], s82 offen lds")
            if i < 3:
                R.append(f"s_add_u32 s82, s82, {32*1024}")
        return R

    nlab = [0]

    def guarded(R):
        nlab[0] += 1
        lab = f"K1_SK{nlab[0]}"
        return ["s_cmp_eq_u32 s81, 1", f"s_cbranch_scc1 {lab}"] + R + [f"{lab}:"]

    issued = []
    first = dmaX(0) + dmaW(0) + dmaW(1) + dmaX(1) + dmaW(2)
    issued += ["X0", "W0", "W1", "X1", "W2"]
    A("s_cmp_eq_u32 s81, 1")
    A("s_cbranch_scc0 K1_H0")
    A("s_waitcnt vmcnt(0)")
    A("s_branch K1_H1")
    A("K1_H0:")
    A.extend(first)
    A("K1_H1:")

    def waitfor(needed):
        last = max(issued.index(n) for n in needed)
        return f"s_waitcnt vmcnt({4*(len(issued)-1-last)})"

    A(waitfor(["X0", "W0"]))
    A("s_barrier")
    stamp(A, 1)
    A.extend(guarded(dmaW(3) + dmaX(2) + dmaW(4)))
    issued += ["W3", "X2", "W4"]
    nseg = 11
    per = -(-len(G) // nseg)
    for s in range(16):
        if s < nseg:
            A.extend(G[s * per:(s + 1) * per])
        if s == 12:
            A.extend(W)
        if s == 13:
            A("s_waitcnt vmcnt(0)")
            A.extend(M)
        if s + 1 < 16 and s < 13:
            nd = [f"W{s+1}"] + ([f"X{(s+1)//2}"] if (s + 1) % 2 == 0 else [])
            A(waitfor(nd))
        A("s_barrier")
        if s in (0, 3, 7, 11, 12, 13): stamp(A, {0:2,3:3,7:4,11:5,12:6,13:7}[s])
        R = []
        if s & 1 and (s + 1) // 2 + 2 < 8:
            R += dmaX((s + 1) // 2 + 2)
            issued.append(f"X{(s+1)//2+2}")
        if s + 5 < 16:
            R += dmaW(s + 5)
            issued.append(f"W{s+5}")
        if R:
            A.extend(guarded(R))
    stamp_end(A, 0)
    A("s_endpgm")

    A("K1_PREP:")
    nbar = 0
    A("s_sub_u32 s25, s25, 28")
    A("s_lshl_b32 s25, s25, 3")
    A("s_add_u32 s25, s25, s24")
    PX = 0
    PWD = 65536
    for half in range(2):
        A(f"s_add_u32 s26, s3, {4*half}")
        A("s_lshl_b32 s27, s26, 1")
        A("v_xor_b32 v2, s27, v1")
        A("v_lshlrev_b32 v2, 4, v2")
        A("s_lshl_b32 s28, s25, 16")
        A("s_lshl_b32 s27, s26, 13")
        A("s_add_u32 s28, s28, s27")
        A(f"s_add_u32 m0, s27, {PX}")
        for i in range(4):
            A(f"buffer_load_dwordx4 v2, s[4:7], s28 offen offset:{i*1024} lds")
        A(f"s_add_u32 m0, s27, {PX+4096}")
        A("s_add_u32 s28, s28, 4096")
        for i in range(4):
            A(f"buffer_load_dwordx4 v2, s[4:7], s28 offen offset:{i*1024} lds")
    A("v_lshrrev_b32 v3, 5, v1")
    A("s_and_b32 s26, s3, 1")
    A("s_lshl_b32 s26, s26, 1")
    A("v_add_u32 v4, s26, v3")
    A("v_lshlrev_b32 v4, 2, v4")
    A("v_and_b32 v5, 31, v1")
    A("v_xor_b32 v5, v5, v4")
    A("v_lshlrev_b32 v5, 4, v5")
    A("v_lshl_add_u32 v5, v3, 10, v5")
    A("s_lshr_b32 s26, s25, 1")
    A("s_and_b32 s27, s25, 1")
    A(f"s_mul_i32 s28, s26, {112*1024}")
    A("s_lshl_b32 s29, s27, 9")
    A("s_add_u32 s28, s28, s29")
    A("s_lshl_b32 s29, s3, 11")
    A("s_add_u32 s28, s28, s29")
    A("s_lshl_b32 s29, s3, 10")
    for r in range(14):
        A(f"s_add_u32 m0, s29, {PWD + r*4096}")
        A("buffer_load_dwordx4 v5, s[20:23], s28 offen lds")
        if r < 13:
            A("s_add_u32 s28, s28, 8192")
    A("v_lshrrev_b32 v6, 3, v1")
    A("s_lshl_b32 s29, s3, 3")
    A("v_add_u32 v6, s29, v6")
    A("v_lshlrev_b32 v7, 4, v6")
    A(f"global_load_dwordx4 v[8:11], v7, s[{P['gw']}:{P['gw']+1}]")
    A(f"global_load_dwordx4 v[12:15], v7, s[{P['gw']}:{P['gw']+1}] offset:512")
    A("s_mov_b32 s30, 0x05040100")
    A("s_mov_b32 s31, 0x07060302")
    A("v_and_b32 v3, 7, v1")
    A("v_lshlrev_b32 v4, 1, v3")
    A("v_xor_b32 v4, v4, v6")
    A("v_lshlrev_b32 v4, 4, v4")
    A("v_lshl_add_u32 v4, v3, 13, v4")
    A("v_lshlrev_b32 v16, 15, v6")
    A("v_lshl_add_u32 v16, v3, 4, v16")
    PG = 65536 + 57344 - 57344
    A("s_waitcnt vmcnt(16)")
    A("s_barrier"); nbar += 1
    stamp(A, 1)
    for half in range(2):
        for i in range(8):
            A(f"ds_read_b128 v[{32+32*half+4*i}:{35+32*half+4*i}], v4 offset:{PX + i*1024 + half*512}")
    A("s_waitcnt vmcnt(0) lgkmcnt(0)")
    A("s_barrier"); nbar += 1
    stamp(A, 2)
    PG = 0
    A("v_mul_u32_u24 v17, 2176, v3")
    A("v_lshl_add_u32 v17, v6, 2, v17")
    A("s_lshl_b32 s28, s25, 7")
    A(f"s_add_u32 s28, s28, {WS_UT:#x}")
    for half in range(2):
        R = 32 + 32 * half
        O = 96 + 32 * half
        gw = 8 + 4 * half
        for i in range(8):
            A(f"v_mov_b32 v{20+i}, 0")
        for d in range(4):
            for i in range(8):
                A(f"v_dot2c_f32_bf16 v{20+i}, v{R+4*i+d}, v{gw+d}")
        for e in range(8):
            for ip in range(4):
                A(f"v_perm_b32 v{O+4*e+ip}, v{R+4*(2*ip+1)+e//2}, v{R+4*(2*ip)+e//2}, s{30+(e&1)}")
        A("s_nop 2")
        for i in range(8):
            A(f"ds_write_b32 v17, v{20+i} offset:{PG + i*272 + half*128}")
        for e in range(8):
            A(f"s_add_u32 s29, s28, {e*4096 + half*32*32768}")
            A(f"buffer_store_dwordx4 v[{O+4*e}:{O+4*e+3}], v16, s[16:19], s29 offen")
    A("v_bfe_u32 v2, v1, 4, 1")
    A("v_lshrrev_b32 v3, 5, v1")
    A("v_bfe_u32 v4, v1, 2, 2")
    A("v_lshl_add_u32 v5, v3, 2, v4")
    A("v_lshlrev_b32 v5, 9, v5")
    A("v_lshl_add_u32 v5, v2, 5, v5")
    A("v_and_b32 v6, 3, v1")
    A("v_lshl_add_u32 v5, v6, 3, v5")
    A("v_xor_b32 v4, s3, v4")
    A("v_lshl_add_u32 v5, v4, 6, v5")
    A(f"v_add_u32 v5, {PWD}, v5")
    A("v_lshlrev_b32 v6, 4, v1")
    A("s_lshl_b32 s28, s27, 3")
    A("s_add_u32 s28, s28, s3")
    A("s_mul_i32 s28, s28, 112")
    A("s_mul_i32 s29, s26, 7")
    A("s_add_u32 s28, s28, s29")
    A("s_lshl_b32 s28, s28, 10")
    A(f"s_add_u32 s28, s28, {WS_WD:#x}")
    for half in range(2):
        for ks in range(7):
            r = 160 + 28 * half + 4 * ks
            for z in range(2):
                A(f"ds_read_b64_tr_b16 v[{r+2*z}:{r+2*z+1}], v5 offset:{(16*ks+8*z)*512 + half*256}")
    A("s_waitcnt lgkmcnt(0)")
    A("s_barrier"); nbar += 1
    stamp(A, 3)
    for half in range(2):
        for ks in range(7):
            r = 160 + 28 * half + 4 * ks
            A(f"s_add_u32 s29, s28, {ks*1024 + half*4*112*1024}")
            A(f"buffer_store_dwordx4 v[{r}:{r+3}], v6, s[16:19], s29 offen")
    A("v_lshrrev_b32 v2, 2, v0")
    A("v_and_b32 v3, 3, v0")
    A("v_mul_u32_u24 v4, 272, v2")
    A("v_lshl_add_u32 v4, v3, 6, v4")
    for i in range(4):
        A(f"ds_read_b128 v[{32+4*i}:{35+4*i}], v4 offset:{PG + i*16}")
    A("s_waitcnt lgkmcnt(0)")
    for i in range(8):
        A(f"v_add_f32 v{32+i}, v{32+i}, v{40+i}")
    for i in range(4):
        A(f"v_add_f32 v{32+i}, v{32+i}, v{36+i}")
    A("v_add_f32 v32, v32, v34")
    A("v_add_f32 v33, v33, v35")
    A("v_add_f32 v32, v32, v33")
    A("v_add_f32_dpp v32, v32, v32 quad_perm:[1,0,3,2] row_mask:0xf bank_mask:0xf")
    A("v_add_f32_dpp v32, v32, v32 quad_perm:[2,3,0,1] row_mask:0xf bank_mask:0xf")
    A("v_cvt_pk_bf16_f32 v32, v32, v32")
    A("v_lshlrev_b32 v32, 16, v32")
    A(f"v_mul_f32 v32, {NLOG2E:#x}, v32")
    A("v_exp_f32 v32, v32")
    A("v_add_f32 v32, 1.0, v32")
    A("v_rcp_f32 v32, v32")
    A("v_cvt_pk_bf16_f32 v32, v32, v32")
    A("v_lshlrev_b32 v32, 16, v32")
    A("v_lshlrev_b32 v2, 2, v2")
    A("s_lshl_b32 s28, s25, 8")
    A(f"s_add_u32 s28, s28, {WS_G:#x}")
    A("buffer_store_dword v32, v2, s[16:19], s28 offen")
    A("v_mov_b32 v33, 0")
    A("v_lshlrev_b32 v2, 2, v0")
    A(f"s_mov_b32 s28, {WS_FL:#x}")
    A("buffer_store_dword v33, v2, s[16:19], s28 offen")
    stamp(A, 4)
    for _ in range(17 - nbar):
        A("s_barrier")
    stamp_end(A, 0)
    A("K1_END:")
    A("s_endpgm")
    return A.lines


K2_RED = 0
K2_AT = 49152
AT_PITCH = 192
K2_FLAG = 61440
K2_CH = 65536
CH_SIZE = 40960
C_KC = 0
C_K = 2048
KP = 4416
C_U = 2048 + 4 * 4416 + 64
UB = 144
U_COPY = 47 * UB + 16
assert U_COPY % 256 == 128 and C_U % 16 == 0
C_X = C_U + 2 * U_COPY + 64
assert C_X % 16 == 0 and C_X + 8192 <= CH_SIZE + 1024
K2_LDS = K2_CH + 2 * 43008


def gen_k2():
    A = Asm()
    CHS = 43008
    A("s_cmp_ge_u32 s2, 256")
    A("s_cbranch_scc1 K2_END")
    stamp_begin(A)
    load_ptrs(A)
    A("v_and_b32 v1, 63, v0")
    A("v_lshrrev_b32 v2, 6, v0")
    A("v_readfirstlane_b32 s3, v2")
    A("s_and_b32 s24, s2, 7")
    A("s_lshr_b32 s25, s2, 3")
    A("s_lshr_b32 s26, s24, 1")
    A("s_lshl_b32 s26, s26, 3")
    A("s_lshr_b32 s29, s25, 2")
    A("s_add_u32 s26, s26, s29")
    A("s_and_b32 s27, s24, 1")
    A("s_lshl_b32 s27, s27, 2")
    A("s_and_b32 s30, s25, 3")
    A("s_add_u32 s27, s27, s30")
    A("s_add_u32 s28, s29, s30")
    A("s_and_b32 s28, s28, 3")
    if OPT["rot2"] == 0:
        A("s_mov_b32 s28, 0")
    elif OPT["rot2"] == 2:
        A("s_and_b32 s28, s28, 1")
        A("s_lshl_b32 s28, s28, 1")
    A("s_waitcnt lgkmcnt(0)")
    stamp(A, 10)
    srd(A, 16, "ws", WS_SIZE)
    srd(A, 4, "out", 0x200000)
    A("s_cmp_ge_u32 s3, 4")
    A("s_cbranch_scc1 K2_CONV")

    ACC = 128
    RING = 8
    A("v_lshlrev_b32 v2, 4, v1")
    A("v_add_u32 v3, 4096, v2")
    A(f"s_mul_i32 s12, s3, {28*1024}")
    A(f"s_mul_i32 s8, s27, {2*112*1024}")
    A("s_add_u32 s8, s8, s12")
    A(f"s_add_u32 s8, s8, {WS_WD:#x}")
    A(f"s_add_u32 s9, s8, {112*1024}")
    A(f"s_mul_i32 s10, s26, {2*112*1024}")
    A("s_add_u32 s10, s10, s12")
    A(f"s_add_u32 s11, s10, {112*1024}")

    def group_offsets():
        R = [f"s_mul_i32 s13, s28, {7*1024}"]
        for q in range(4):
            R.append(f"s_add_u32 s{20+q}, s{8+q}, s13")
        return R

    def loads(i):
        R = []
        for q in range(4):
            r = RING + 16 * i + 4 * q
            R.append(f"buffer_load_dwordx4 v[{r}:{r+3}], v{2 if i < 4 else 3}, s[16:19], s{20+q} offen offset:{(i%4)*1024}")
        return R
    A.extend(group_offsets())
    A("s_barrier")
    for i in range(7):
        A.extend(loads(i))
    stamp(A, 1)
    for r in range(64):
        A(f"v_mov_b32 v{ACC+r}, 0")
    A("s_mov_b32 s31, 0")
    A("K2_LOOP:")
    A("s_add_u32 s28, s28, 1")
    A("s_and_b32 s28, s28, 3")
    A.extend(group_offsets())
    A("s_cmp_eq_u32 s31, 3")
    for q in range(4):
        A(f"s_cselect_b32 s{20+q}, {WS_SIZE:#x}, s{20+q}")
    for i in range(7):
        r = RING + 16 * i
        A("s_waitcnt vmcnt(24)")
        for na in range(2):
            for mb in range(2):
                c = ACC + 16 * (2 * na + mb)
                A(f"v_mfma_f32_32x32x16_bf16 v[{c}:{c+15}], v[{r+4*na}:{r+4*na+3}], v[{r+8+4*mb}:{r+11+4*mb}], v[{c}:{c+15}]")
        A.extend(loads(i))
    A("s_add_u32 s31, s31, 1")
    A("s_cmp_lt_u32 s31, 4")
    A("s_cbranch_scc1 K2_LOOP")
    stamp(A, 2)
    A("s_and_b32 s12, s3, 1")
    A("s_lshr_b32 s13, s3, 1")
    A("s_lshl_b32 s14, s26, 6")
    A("s_lshl_b32 s15, s12, 5")
    A("s_add_u32 s14, s14, s15")
    A("v_and_b32 v4, 31, v1")
    A("v_lshlrev_b32 v5, 2, v4")
    A("s_lshl_b32 s15, s14, 2")
    A(f"s_add_u32 s15, s15, {WS_G:#x}")
    A("s_waitcnt vmcnt(0)")
    A("buffer_load_dword v6, v5, s[16:19], s15 offen")
    for q in range(4):
        A(f"s_cmp_eq_u32 s3, {q}")
        A(f"s_cbranch_scc1 K2_RW{q}")
        A(f"s_sub_u32 s20, s3, {q+1}")
        A("s_and_b32 s20, s20, 3")
        A("s_lshl_b32 s20, s20, 12")
        A("v_add_u32 v7, s20, v2")
        for rg in range(4):
            c = ACC + 16 * q + 4 * rg
            A(f"ds_write_b128 v7, v[{c}:{c+3}] offset:{K2_RED + q*12288 + rg*1024}")
        A(f"s_branch K2_RX{q}")
        A(f"K2_RW{q}:")
        for r in range(16):
            A(f"v_mov_b32 v{64+r}, v{ACC+16*q+r}")
        A(f"K2_RX{q}:")
    A("s_waitcnt lgkmcnt(0)")
    stamp(A, 3)
    A("s_barrier")
    stamp(A, 4)
    A("s_mul_i32 s20, s3, 12288")
    A("v_add_u32 v7, s20, v2")
    for sidx in range(3):
        for rg in range(4):
            r = 8 + 16 * sidx + 4 * rg
            A(f"ds_read_b128 v[{r}:{r+3}], v7 offset:{K2_RED + sidx*4096 + rg*1024}")
    A("v_bfe_u32 v80, v1, 2, 2")
    A("v_lshrrev_b32 v81, 5, v1")
    A("v_lshl_add_u32 v80, v81, 2, v80")
    A("s_lshl_b32 s20, s13, 5")
    A("v_add_u32 v80, s20, v80")
    A(f"v_mul_u32_u24 v80, {AT_PITCH}, v80")
    A("v_bfe_u32 v82, v1, 4, 1")
    A("v_lshl_add_u32 v80, v82, 5, v80")
    A("v_and_b32 v82, 3, v1")
    A("v_lshl_add_u32 v80, v82, 3, v80")
    A("s_lshl_b32 s20, s12, 6")
    A("v_add_u32 v80, s20, v80")
    for rg in range(4):
        A(f"ds_read_b64_tr_b16 v[{84+2*rg}:{85+2*rg}], v80 offset:{K2_AT + rg*8*AT_PITCH}")
    A("v_lshlrev_b32 v83, 10, v4")
    A("v_lshl_add_u32 v83, v81, 4, v83")
    A("s_lshl_b32 s20, s14, 10")
    A("s_lshl_b32 s21, s27, 7")
    A("s_add_u32 s20, s20, s21")
    A("s_lshl_b32 s21, s13, 6")
    A("s_add_u32 s20, s20, s21")
    A("s_waitcnt vmcnt(0) lgkmcnt(0)")
    A("v_sub_f32 v5, 1.0, v6")
    A("v_cvt_pk_bf16_f32 v5, v5, v5")
    A("v_lshlrev_b32 v5, 16, v5")
    for r in range(16):
        A(f"v_add_f32 v{64+r}, v{64+r}, v{8+r}")
        A(f"v_add_f32 v{24+r}, v{24+r}, v{40+r}")
    for r in range(16):
        A(f"v_add_f32 v{64+r}, v{64+r}, v{24+r}")
    for r in range(16):
        src = 84 + r // 2
        if r & 1:
            A(f"v_and_b32 v{8+r}, 0xffff0000, v{src}")
        else:
            A(f"v_lshlrev_b32 v{8+r}, 16, v{src}")
    for r in range(16):
        A(f"v_mul_f32 v{64+r}, v5, v{64+r}")
    for r in range(16):
        A(f"v_fmac_f32 v{64+r}, v6, v{8+r}")
    for r in range(8):
        A(f"v_cvt_pk_bf16_f32 v{96+r}, v{64+2*r}, v{65+2*r}")
    for pr in range(2):
        b = 96 + 4 * pr
        A(f"v_permlane32_swap_b32 v{b}, v{b+2}")
        A(f"v_permlane32_swap_b32 v{b+1}, v{b+3}")
        A(f"buffer_store_dwordx4 v[{b}:{b+3}], v83, s[4:7], s20 offen offset:{pr*32}")
    stamp_end(A, 1)
    A("s_endpgm")

    A("K2_CONV:")
    A("s_sub_u32 s3, s3, 4")
    A("s_lshr_b32 s69, s3, 1")
    A("s_and_b32 s71, s3, 1")
    A("s_lshl_b32 s70, s2, 1")
    A("s_add_u32 s70, s70, s69")
    A(f"s_mul_i32 s72, s69, {CHS}")
    A(f"s_add_u32 s72, s72, {K2_CH}")
    A("v_lshlrev_b32 v2, 4, v1")
    A(f"s_mul_i32 s73, s70, {KC_PITCH}")
    A("s_mul_i32 s74, s71, 768")
    A("s_add_u32 s73, s73, s74")
    A(f"s_add_u32 s73, s73, {WS_KC:#x}")
    A("buffer_load_dwordx4 v[8:11], v2, s[16:19], s73 offen")
    A("s_lshl_b32 s73, s70, 12")
    A("s_lshl_b32 s75, s71, 11")
    A("s_add_u32 s73, s73, s75")
    A(f"s_add_u32 s73, s73, {WS_UT:#x}")
    A("buffer_load_dwordx4 v[12:15], v2, s[16:19], s73 offen")
    A("buffer_load_dwordx4 v[16:19], v2, s[16:19], s73 offen offset:1024")
    A("v_mov_b32 v20, 0\nv_mov_b32 v21, 0\nv_mov_b32 v22, 0\nv_mov_b32 v23, 0")
    A("v_lshlrev_b32 v3, 2, v1")
    A(f"ds_write_b32 v3, v20 offset:{K2_FLAG}")
    A(f"s_mul_i32 s73, s71, {U_COPY}")
    A("s_add_u32 s73, s73, s72")
    A("v_add_u32 v4, s73, v2")
    A(f"ds_write_b128 v4, v[20:23] offset:{C_U}")
    A(f"ds_write_b128 v4, v[20:23] offset:{C_U+1024}")
    A(f"ds_write_b128 v4, v[20:23] offset:{C_U+2176-1024}")
    A(f"s_mul_i32 s73, s71, {2*KP}")
    A("s_add_u32 s73, s73, s72")
    A("v_and_b32 v4, 7, v1")
    A("v_lshl_add_u32 v4, v4, 4, s73")
    A(f"ds_write_b128 v4, v[20:23] offset:{C_K}")
    A(f"ds_write_b128 v4, v[20:23] offset:{C_K+KP}")
    A("s_waitcnt lgkmcnt(0)")
    A("s_barrier")
    stamp(A, 1)
    GA = 32
    ZIDX = 767 + 1
    A("s_lshl_b32 s73, s71, 10")
    A("v_lshl_add_u32 v4, v1, 3, s73")
    A(f"s_sub_u32 s74, s72, {2*(0x4300-128)}")
    for g in range(2):
        for rho in range(-3, 8):
            d = GA + 11 * g + rho + 3
            A(f"v_add_u32 v5, {512*g+rho}, v4")
            A("v_cvt_f32_i32 v6, v5")
            A("v_cvt_pk_bf16_f32 v6, v6, v6")
            A("v_and_b32 v6, 0xffff, v6")
            A(f"v_lshl_add_u32 v{d}, v6, 1, s74")
            if g == 0:
                A("v_lshl_add_u32 v6, v5, 1, s72")
                A("v_cmp_gt_i32 vcc, 0x80, v5")
                A(f"v_cndmask_b32 v{d}, v{d}, v6, vcc")
                if rho < 0:
                    A(f"v_mov_b32 v6, s72")
                    A(f"v_add_u32 v6, {2*ZIDX}, v6")
                    A("v_cmp_gt_i32 vcc, 0, v5")
                    A(f"v_cndmask_b32 v{d}, v{d}, v6, vcc")
    A("s_mul_i32 s73, s71, 768")
    A("s_add_u32 s73, s73, s72")
    A("v_add_u32 v4, s73, v2")
    A("v_mov_b32 v5, s72")
    A(f"ds_write_b32 v5, v20 offset:{2*ZIDX}")
    A("s_mov_b32 exec_hi, 0xffff")
    A("s_waitcnt vmcnt(2)")
    A(f"ds_write_b128 v4, v[8:11] offset:{C_KC}")
    A("s_mov_b64 exec, -1")
    A("s_lshl_b32 s73, s71, 7")
    A("v_add_u32 v4, s73, v1")
    A("v_lshrrev_b32 v5, 3, v4")
    A("v_add_u32 v5, v5, v4")
    A("v_lshl_add_u32 v5, v5, 4, s72")
    A("v_add_u32 v4, 1, v4")
    A("v_lshrrev_b32 v6, 3, v4")
    A("v_add_u32 v6, v6, v4")
    A("v_lshl_add_u32 v6, v6, 4, s72")
    A("s_waitcnt vmcnt(0)")
    for i in range(2):
        r = 12 + 4 * i
        o = C_U + 15 * UB + i * 8 * UB
        A(f"ds_write_b128 v5, v[{r}:{r+3}] offset:{o + U_COPY}")
        A(f"ds_write_b64 v5, v[{r}:{r+1}] offset:{o + 8}")
        A(f"ds_write_b64 v6, v[{r+2}:{r+3}] offset:{o}")

    nsync = [0]

    def pair_sync():
        nsync[0] += 1
        n = nsync[0]
        R = ["s_waitcnt lgkmcnt(0)",
             f"v_mov_b32 v7, {n}",
             f"ds_write_b32 v24, v7 offset:{K2_FLAG}",
             "s_mov_b32 s76, 0x40000",
             f"K2_SY{n}:",
             f"ds_read_b32 v7, v25 offset:{K2_FLAG}",
             "s_sub_u32 s76, s76, 1",
             f"s_cbranch_scc1 K2_SZ{n}",
             "s_waitcnt lgkmcnt(0)",
             "v_readfirstlane_b32 s73, v7",
             f"s_cmp_lt_u32 s73, {n}",
             f"s_cbranch_scc1 K2_SY{n}",
             f"K2_SZ{n}:",
             "s_waitcnt lgkmcnt(0)"]
        return R
    A("s_lshl_b32 s73, s3, 2")
    A("v_mov_b32 v24, s73")
    A("s_xor_b32 s73, s73, 4")
    A("v_mov_b32 v25, s73")
    A.extend(pair_sync())
    stamp(A, 2)
    GV = 64
    for k in range(22):
        A(f"ds_read_u16 v{GV+k}, v{GA+k}")
    A("s_lshl_b32 s73, s71, 11")
    A("s_add_u32 s73, s73, s72")
    A("v_add_u32 v4, s73, v2")
    for g in range(2):
        A(f"s_waitcnt lgkmcnt({11 if g == 0 else 4})")
        for b in range(4):
            for i in range(4):
                x = b + 3 - 2 * i
                A(f"v_lshl_or_b32 v{96+16*g+4*b+i}, v{GV+11*g+x+3}, 16, v{GV+11*g+x+4}")
        for b in range(4):
            A(f"ds_write_b128 v4, v[{96+16*g+4*b}:{99+16*g+4*b}] offset:{C_K + b*KP + 7*16 + g*1024}")
    A.extend(pair_sync())
    stamp(A, 3)
    A("v_and_b32 v4, 3, v1")
    A(f"v_mul_u32_u24 v4, {KP}, v4")
    A("v_bfe_u32 v5, v1, 2, 3")
    A("v_lshrrev_b32 v6, 5, v1")
    A("v_sub_u32 v5, v5, v6")
    A("v_lshl_add_u32 v4, v5, 4, v4")
    A("s_lshl_b32 s73, s71, 10")
    A("s_add_u32 s73, s73, s72")
    A(f"s_add_u32 s73, s73, {C_K + 16}")
    A("v_add_u32 v26, s73, v4")
    A("v_and_b32 v4, 1, v1")
    A(f"v_mul_u32_u24 v4, {U_COPY}, v4")
    A("v_bfe_u32 v5, v1, 1, 4")
    A(f"v_mul_u32_u24 v5, {UB}, v5")
    A("v_add_u32 v4, v4, v5")
    A("v_lshl_add_u32 v4, v6, 4, v4")
    A(f"s_mul_i32 s73, s71, {8*UB}")
    A("s_sub_u32 s73, s72, s73")
    A(f"s_add_u32 s73, s73, {C_U + 15*UB}")
    A("v_add_u32 v27, s73, v4")
    AC = 128
    for r in range(32):
        A(f"v_mov_b32 v{AC+r}, 0")
    FR = [32, 48, 64, 80]

    def creads(ks):
        f = FR[ks]
        return [f"ds_read_b128 v[{f}:{f+3}], v26 offset:{(3-ks)*32}",
                f"ds_read_b128 v[{f+4}:{f+7}], v27 offset:{ks*32}",
                f"ds_read_b128 v[{f+8}:{f+11}], v27 offset:{ks*32+16*UB}",
                f"ds_read_b128 v[{f+12}:{f+15}], v26 offset:{(3-ks)*32+2048}"]

    def cmf(ks):
        f = FR[ks]
        return [f"v_mfma_f32_32x32x16_bf16 v[{AC}:{AC+15}], v[{f}:{f+3}], v[{f+4}:{f+7}], v[{AC}:{AC+15}]",
                f"v_mfma_f32_32x32x16_bf16 v[{AC+16}:{AC+31}], v[{f}:{f+3}], v[{f+8}:{f+11}], v[{AC+16}:{AC+31}]",
                f"v_mfma_f32_32x32x16_bf16 v[{AC+16}:{AC+31}], v[{f+12}:{f+15}], v[{f+4}:{f+7}], v[{AC+16}:{AC+31}]"]
    A.extend(creads(0))
    A.extend(creads(1))
    A("s_mov_b32 s31, 0")
    A("K2_CL:")
    for ks in range(4):
        if ks == 2:
            A("v_add_u32 v26, 128, v26")
            A(f"v_subrev_u32 v27, {UB}, v27")
        A("s_waitcnt lgkmcnt(4)")
        A.extend(interleave(cmf(ks), creads((ks + 2) % 4), per=2))
    A("s_add_u32 s31, s31, 1")
    A("s_cmp_lt_u32 s31, 8")
    A("s_cbranch_scc1 K2_CL")
    stamp(A, 4)
    A("s_waitcnt lgkmcnt(0)")
    A("s_lshl_b32 s73, s71, 12")
    A("s_add_u32 s73, s73, s72")
    A("v_add_u32 v4, s73, v2")
    A("s_xor_b32 s74, s71, 1")
    A("s_lshl_b32 s74, s74, 12")
    A("s_add_u32 s74, s74, s72")
    A("v_add_u32 v5, s74, v2")
    A("s_cmp_eq_u32 s71, 0")
    A("s_cbranch_scc1 K2_EX")
    for r in range(16):
        A(f"v_swap_b32 v{AC+r}, v{AC+16+r}")
    A("K2_EX:")
    for rg in range(4):
        A(f"ds_write_b128 v4, v[{AC+16+4*rg}:{AC+19+4*rg}] offset:{C_X + rg*1024}")
    A.extend(pair_sync())
    stamp(A, 5)
    for rg in range(4):
        A(f"ds_read_b128 v[{32+4*rg}:{35+4*rg}], v5 offset:{C_X + rg*1024}")
    A("v_bfe_u32 v6, v1, 1, 4")
    A("v_lshlrev_b32 v6, 7, v6")
    A("v_and_b32 v7, 1, v1")
    A("v_lshl_add_u32 v6, v7, 3, v6")
    A("v_lshrrev_b32 v7, 5, v1")
    A("v_lshl_add_u32 v6, v7, 4, v6")
    A("s_lshl_b32 s73, s71, 11")
    A("s_add_u32 s73, s73, s72")
    A("v_add_u32 v6, s73, v6")
    A("v_add_u32 v7, s73, v2")
    A("s_waitcnt lgkmcnt(0)")
    for r in range(16):
        A(f"v_add_f32 v{AC+r}, v{AC+r}, v{32+r}")
    for r in range(8):
        A(f"v_cvt_pk_bf16_f32 v{48+r}, v{AC+2*r}, v{AC+2*r+1}")
    for rg in range(4):
        A(f"ds_write_b64 v6, v[{48+2*rg}:{49+2*rg}] offset:{C_K + rg*32}")
    A("s_waitcnt lgkmcnt(0)")
    A(f"ds_read_b128 v[56:59], v7 offset:{C_K}")
    A(f"ds_read_b128 v[60:63], v7 offset:{C_K+1024}")
    A("s_lshl_b32 s73, s70, 12")
    A("s_lshl_b32 s74, s71, 11")
    A("s_add_u32 s73, s73, s74")
    A(f"s_add_u32 s73, s73, {WS_AT:#x}")
    A("s_waitcnt lgkmcnt(0)")
    A("buffer_store_dwordx4 v[56:59], v2, s[16:19], s73 offen sc0 sc1")
    A("buffer_store_dwordx4 v[60:63], v2, s[16:19], s73 offen offset:1024 sc0 sc1")
    A("s_waitcnt vmcnt(0)")
    A("v_mov_b32 v4, 0")
    A("v_mov_b32 v5, 1")
    A("s_mov_b64 exec, 1")
    A(f"ds_add_rtn_u32 v6, v4, v5 offset:{K2_FLAG+64}")
    A("s_waitcnt lgkmcnt(0)")
    A("v_readfirstlane_b32 s73, v6")
    A("s_cmp_eq_u32 s73, 3")
    A("s_cbranch_scc0 K2_NOSIG")
    A("s_lshl_b32 s73, s2, 2")
    A("v_mov_b32 v4, s73")
    A(f"s_mov_b32 s74, {WS_FL:#x}")
    A("buffer_store_dword v5, v4, s[16:19], s74 offen sc0 sc1")
    stamp(A, 6)
    A("s_mov_b64 exec, -1")
    A("v_and_b32 v4, 31, v1")
    A("v_lshlrev_b32 v4, 2, v4")
    A("s_lshl_b32 s73, s27, 7")
    A("s_add_u32 s74, s74, s73")
    A("s_mov_b32 s76, 0x40000")
    A("K2_POLL:")
    A("buffer_load_dword v6, v4, s[16:19], s74 offen sc1")
    A("s_waitcnt vmcnt(0)")
    A("v_cmp_ne_u32 vcc, 1, v6")
    A("s_cbranch_vccz K2_GOT")
    A("s_sleep 4")
    A("s_sub_u32 s76, s76, 1")
    A("s_cbranch_scc0 K2_POLL")
    A("K2_GOT:")
    stamp(A, 7)
    A("s_mov_b64 exec, -1")
    A("v_lshrrev_b32 v4, 3, v1")
    A("v_and_b32 v5, 7, v1")
    A("v_lshlrev_b32 v6, 12, v4")
    A("v_lshl_add_u32 v6, v5, 4, v6")
    A("s_lshl_b32 s73, s27, 18")
    A("s_lshl_b32 s74, s26, 7")
    A("s_add_u32 s73, s73, s74")
    A(f"s_add_u32 s73, s73, {WS_AT:#x}")
    for i in range(8):
        A(f"buffer_load_dwordx4 v[{32+4*i}:{35+4*i}], v6, s[16:19], s73 offen sc1")
        if i < 7:
            A("s_add_u32 s73, s73, 32768")
    A(f"v_mul_u32_u24 v4, {AT_PITCH}, v4")
    A("v_lshl_add_u32 v4, v5, 4, v4")
    for i in range(8):
        A(f"s_waitcnt vmcnt({7-i})")
        A(f"ds_write_b128 v4, v[{32+4*i}:{35+4*i}] offset:{K2_AT + 8*i*AT_PITCH}")
    A("s_waitcnt lgkmcnt(0)")
    A("K2_NOSIG:")
    stamp(A, 8)
    A("s_barrier")
    stamp_end(A, 1)
    A("K2_END:")
    A("s_endpgm")
    return A.lines


def main(path):
    hdr = open("cdna_kernels/" + NAME + ".s.ref").read().split("\n")
    hdr = [l for l in hdr if l.startswith(";") and "@launch" not in l and "Override launch" not in l and "grid=ceil" not in l]
    k1, d1 = kernel_text("ssm_k1_kernel", gen_k1())
    k2, d2 = kernel_text("ssm_k2_kernel", gen_k2())
    out = hdr + [
        "; @launch kernel=ssm_k1_kernel grid=(256,1,1) block=(512,1,1) lds=163840",
        f"; @launch kernel=ssm_k2_kernel grid=(256,1,1) block=(512,1,1) lds={K2_LDS}",
        '.amdgcn_target "amdgcn-amd-amdhsa--gfx950"',
        ".text", k1, k2,
        '.section .rodata,"a"', ".p2align 6", d1, ".p2align 6", d2, ""]
    open(path, "w").write("\n".join(out))


if __name__ == "__main__":
    for a in list(sys.argv):
        if "=" in a:
            k, v = a.split("=")
            OPT[k] = int(v)
            sys.argv.remove(a)
    if "--stamp" in sys.argv:
        STAMP = True
        sys.argv.remove("--stamp")
    main(sys.argv[1] if len(sys.argv) > 1 else "cdna_kernels/" + NAME + ".s")
```
